```python
import torch

def _softmax(x, axis=-1):
    return torch.softmax(x, dim=axis)
def _gelu(x):
    return torch.nn.functional.gelu(x, approximate="tanh")
def _silu(x):
    return torch.nn.functional.silu(x)
def _sigmoid(x):
    return torch.sigmoid(x)
def _layernorm(x, axis=-1, eps=1e-5):
    m = x.mean(dim=axis, keepdim=True)
    v = x.var(dim=axis, keepdim=True, unbiased=False)
    return (x - m) / torch.sqrt(v + eps)
def _scatter_add(tgt, idx, src, axis=0):
    return tgt.clone().index_add_(axis, idx, src)
def _segment_sum(src, seg, n):
    out = torch.zeros((n,) + src.shape[1:], dtype=src.dtype)
    return out.index_add_(0, seg, src)
def _pad(x, pw):
    flat = tuple(v for pair in reversed(pw) for v in pair)
    return torch.nn.functional.pad(x, flat)

kernel_name = 'gated_mix__ssm_conv_h3__softmax_full_mha__prompt'

def setup_inputs():

    _w = (lambda a: (lambda t: t.to(torch.bfloat16) if t.is_floating_point() else t)(torch.as_tensor(a)))
    def _A_setup():
        B, S, D = 1, 2048, 512
        ks = 4
        return {
            "q": _w((lambda *s: torch.randn(*s, dtype=torch.bfloat16) * 0.05)(B, S, D)),
            "k": _w((lambda *s: torch.randn(*s, dtype=torch.bfloat16) * 0.4)(B, S, D)),
            "v": _w((lambda *s: torch.randn(*s, dtype=torch.bfloat16) * 0.4)(B, S, D)),
            "shift_k": _w((lambda *s: torch.randn(*s, dtype=torch.bfloat16) * 0.4)(D, ks) * 0.5),
            "ssm_k": _w((lambda *s: torch.randn(*s, dtype=torch.bfloat16) * 1.6)(D, S) * (1.0 / S ** 0.5)),
            "ssm_D": _w((lambda *s: torch.randn(*s, dtype=torch.bfloat16) * 0.4)(D)),
        }
    _A_in = _A_setup()

    def _B_setup():
        B, S, D = 1, 2048, 512
        return {
            "x": _w((lambda *s: torch.randn(*s, dtype=torch.bfloat16) * 0.05)(B, S, D)),
            "wqkv": _w((lambda *s: torch.randn(*s, dtype=torch.bfloat16) * 0.8)(D, 3 * D)),
            "wo": _w((lambda *s: torch.randn(*s, dtype=torch.bfloat16) * 0.05)(D, D)),
        }
    _B_in = _B_setup()

    return {
        "A_q": _A_in["q"],
        "A_k": _A_in["k"],
        "A_v": _A_in["v"],
        "A_shift_k": _A_in["shift_k"],
        "A_ssm_k": _A_in["ssm_k"],
        "A_ssm_D": _A_in["ssm_D"],
        "B_x": _B_in["x"],
        "B_wqkv": _B_in["wqkv"],
        "B_wo": _B_in["wo"],
        "gate_w": _w((lambda *s: torch.randn(*s, dtype=torch.bfloat16) * 0.05)(512) * 16.0),
    }

def reference(A_q, A_k, A_v, A_shift_k, A_ssm_k, A_ssm_D, B_x, B_wqkv, B_wo, gate_w):
    def _A_ref(q, k, v, shift_k, ssm_k, ssm_D):
        B, S, D = q.shape
        ks = shift_k.shape[-1]
        k_pad = _pad(k, ((0, 0), (ks - 1, 0), (0, 0)))
        k_shift = torch.zeros_like(k)
        for t in range(ks):
            k_shift = k_shift + k_pad[:, t:t + S, :] * shift_k[:, ks - 1 - t][None, None, :]
        kv = k_shift * v
        L = 2 * S
        kv_pad = _pad(kv, ((0, 0), (0, S), (0, 0)))
        kf_pad = _pad(ssm_k, ((0, 0), (0, S)))
        kv_f = (lambda x, axes=(-2,-1): torch.fft.rfft2(x.float(), dim=axes))(kv_pad[:, None, :, :], axes=(1, 2))
        kf_f = (lambda x, axes=(-2,-1): torch.fft.rfft2(x.float(), dim=axes))(kf_pad[:, None, :], axes=(1, 2))
        kf_f = (lambda x, *d: x.permute(*d))(kf_f, 1, 2, 0)
        y_f = kv_f * kf_f[None, :, :, :]
        y = (lambda x, s, axes=(-2,-1): torch.fft.irfft2(x, s=s, dim=axes).to(torch.bfloat16))(y_f, (1, L), axes=(1, 2))[:, 0, :S, :]
        y = y + kv * ssm_D[None, None, :]
        return q * y

    def _B_ref(x, wqkv, wo):
        B, S, D = x.shape
        H = 32; Dh = D // H
        qkv = (lambda x, *d: x.permute(*d))((x @ wqkv).reshape(B, S, 3, H, Dh), 2, 0, 3, 1, 4)
        q, k, v = qkv[0], qkv[1], qkv[2]
        scale = Dh ** -0.5
        scores = torch.einsum("bhqd,bhkd->bhqk", q, k) * scale
        p = _softmax(scores, axis=-1)
        o = torch.einsum("bhqk,bhkd->bhqd", p, v)
        return (lambda x, *d: x.permute(*d))(o, 0, 2, 1, 3).reshape(B, S, D) @ wo

    x = A_q
    g = _sigmoid((x * gate_w).sum(-1, keepdims=True))
    a = _A_ref(x, A_k, A_v, A_shift_k, A_ssm_k, A_ssm_D)
    b = _B_ref(x, B_wqkv, B_wo)
    return g * a + (1 - g) * b
```

```python
import re

def v(i): return f"v{i}"
def s(i): return f"s{i}"
def vr(i, n): return f"v{i}" if n == 1 else f"v[{i}:{i+n-1}]"
def sr(i, n): return f"s{i}" if n == 1 else f"s[{i}:{i+n-1}]"

class RA:
    def __init__(self, lo, hi):
        self.lo, self.hi = lo, hi
        self.used = [False] * hi
        self.maxused = lo - 1
    def alloc(self, n=1, align=1):
        i = self.lo
        while i + n <= self.hi:
            i = (i + align - 1) // align * align
            if i + n > self.hi: break
            if not any(self.used[i:i+n]):
                for j in range(i, i+n): self.used[j] = True
                self.maxused = max(self.maxused, i+n-1)
                return i
            i += 1
        raise RuntimeError(f"out of registers allocating {n}")
    def free(self, i, n=1):
        for j in range(i, i+n):
            assert self.used[j]
            self.used[j] = False

_REG = re.compile(r"\b([vsa])\[(\d+):(\d+)\]|\b([vsa])(\d+)\b|\b(vcc|exec|m0|scc)\b")

def regs_of(text):
    out = set()
    for m in _REG.finditer(text):
        if m.group(1):
            for i in range(int(m.group(2)), int(m.group(3)) + 1): out.add((m.group(1), i))
        elif m.group(4):
            out.add((m.group(4), int(m.group(5))))
        else:
            n = m.group(6)
            if n == 'vcc': out.add(('vcc', 0))
            else: out.add((n, 0))
    return out

def split_ops(s_):
    ops, depth, cur = [], 0, ""
    for ch in s_:
        if ch == '[': depth += 1
        if ch == ']': depth -= 1
        if ch == ',' and depth == 0:
            ops.append(cur.strip()); cur = ""
        else: cur += ch
    if cur.strip(): ops.append(cur.strip())
    return ops

TRANS = ("v_exp_f32", "v_log_f32", "v_rcp_f32", "v_rsq_f32", "v_sqrt_f32", "v_sin_f32", "v_cos_f32",
         "v_exp_f16", "v_log_f16", "v_rcp_f16", "v_rsq_f16", "v_sqrt_f16")
def mfma_passes(mn):
    if "32x32x16" in mn or "32x32x8" in mn: return 8
    if "16x16x32" in mn or "16x16x16" in mn: return 4
    raise RuntimeError("unknown mfma " + mn)
T_D2X = {2: 5, 4: 8, 8: 12, 16: 20}
T_DOVL = {2: 4, 4: 6, 8: 10, 16: 18}
T_CWAR = {2: 1, 4: 3, 8: 7, 16: 15}

class Ins:
    __slots__ = ("pos", "cls", "dst", "src", "A", "B", "C", "passes", "trans", "text", "storedata", "mn")

class Kern:
    def __init__(self, name):
        self.name = name
        self.lines = []
        self.pos = 0
        self.hist = []
        self.nlabel = 0
        self.nops_added = 0
    def raw(self, t):
        self.lines.append(t)
    def comment(self, t):
        self.lines.append("    ; " + t)
    def label(self, name):
        self.lines.append(name + ":")
    def newlabel(self, base="L"):
        self.nlabel += 1
        return f"{self.name}_{base}{self.nlabel}"
    def _parse(self, t):
        t = t.split(";")[0].strip()
        mn, _, rest = t.partition(" ")
        I = Ins(); I.text = t; I.mn = mn; I.trans = False; I.passes = 0
        I.dst = set(); I.src = set(); I.A = set(); I.B = set(); I.C = set(); I.storedata = set()
        ops = split_ops(rest)
        if mn.startswith("v_mfma"):
            I.cls = "mfma"; I.passes = mfma_passes(mn)
            I.dst = regs_of(ops[0]); I.A = regs_of(ops[1]); I.B = regs_of(ops[2]); I.C = regs_of(ops[3])
            I.src = I.A | I.B | I.C
        elif mn.startswith("v_"):
            I.cls = "valu"; I.trans = mn in TRANS
            if mn.startswith("v_permlane") and "swap" in mn:
                I.dst = regs_of(ops[0]) | regs_of(ops[1]); I.src = set(I.dst)
            else:
                I.dst = regs_of(ops[0])
                for o in ops[1:]: I.src |= regs_of(o)
                if mn.startswith("v_fmac") or mn.startswith("v_pk_fmac") or mn.startswith("v_dot") : I.src |= I.dst
                if mn in ("v_add_co_u32", "v_addc_co_u32", "v_sub_co_u32", "v_subb_co_u32"):
                    I.dst |= regs_of(ops[1])
        elif mn.startswith("buffer_") or mn.startswith("global_"):
            I.cls = "vmem"
            if "store" in mn or "atomic" in mn:
                for o in ops: I.src |= regs_of(o)
                if "x3" in mn or "x4" in mn: I.storedata = regs_of(ops[0])
            elif " lds" in t:
                for o in ops: I.src |= regs_of(o)
                I.src.add(('m0', 0))
            else:
                I.dst = regs_of(ops[0])
                for o in ops[1:]: I.src |= regs_of(o)
        elif mn.startswith("ds_"):
            I.cls = "ds"
            if mn.startswith("ds_read") or mn.startswith("ds_bpermute") or mn.startswith("ds_permute") or mn.startswith("ds_swizzle"):
                I.dst = regs_of(ops[0])
                for o in ops[1:]: I.src |= regs_of(o)
            else:
                for o in ops: I.src |= regs_of(o)
        elif mn.startswith("s_"):
            I.cls = "salu"
            if mn in ("s_nop", "s_waitcnt", "s_barrier", "s_endpgm", "s_setprio", "s_branch", "s_sleep") or mn.startswith("s_cbranch") or mn.startswith("s_cmp") or mn.startswith("s_bitcmp"):
                for o in ops: I.src |= regs_of(o)
            else:
                if ops: I.dst = regs_of(ops[0])
                for o in ops[1:]: I.src |= regs_of(o)
        else:
            raise RuntimeError("cannot classify: " + t)
        return I
    def _need(self, P, N):
        need = 0
        vP = {r for r in P.dst if r[0] == 'v'}
        if P.cls == "valu":
            if N.cls == "mfma" and (vP & N.src): need = max(need, 2)
            if N.cls == "valu":
                if N.mn.startswith("v_readfirstlane") or N.mn.startswith("v_readlane"):
                    if vP & N.src: need = max(need, 1)
                if N.mn.startswith("v_permlane") and (vP & N.src): need = max(need, 2)
                if "dpp" in N.text or "row_" in N.text or "quad_perm" in N.text:
                    if vP & N.src: need = max(need, 2)
                if P.trans and not N.trans and (vP & N.src): need = max(need, 1)
                sP = {r for r in P.dst if r[0] in ('s', 'vcc')}
                if sP & N.src: need = max(need, 2)
                if "op_sel" in P.text or "sdwa" in P.text:
                    if vP & (N.src | N.dst): need = max(need, 1)
            if N.cls in ("vmem",):
                sP = {r for r in P.dst if r[0] in ('s', 'vcc')}
                if sP & N.src: need = max(need, 5)
        if P.cls == "mfma":
            D = P.dst
            if N.cls == "mfma":
                if D & (N.A | N.B): need = max(need, T_D2X[P.passes])
                if D & N.C:
                    if D == N.C and P.passes == N.passes: need = max(need, 2 if P.passes == 2 else 0)
                    else: need = max(need, T_DOVL[P.passes])
            elif N.cls in ("valu", "vmem", "ds"):
                if D & (N.src | N.dst): need = max(need, T_D2X[P.passes])
                if N.cls == "valu" and (P.C & N.dst): need = max(need, T_CWAR[P.passes])
        if P.cls == "vmem" and P.storedata:
            if N.cls == "valu" and (P.storedata & N.dst): need = max(need, 2)
            elif (P.storedata & N.dst): need = max(need, 1)
        if P.cls == "salu" and ('m0', 0) in P.dst:
            if N.cls == "vmem" and ('m0', 0) in N.src: need = max(need, 1)
        return need
    def __call__(self, t):
        for line in t.split("\n"):
            line = line.strip()
            if not line or line.startswith(";"):
                if line: self.lines.append("    " + line)
                continue
            I = self._parse(line)
            pad = 0
            for P in reversed(self.hist):
                dist = self.pos - P.pos - 1
                if dist >= 20: break
                n = self._need(P, I)
                if n - dist > pad: pad = n - dist
            while pad > 0:
                k = min(pad, 16)
                self.lines.append(f"    s_nop {k-1}")
                self.pos += k; pad -= k; self.nops_added += k
            I.pos = self.pos
            self.lines.append("    " + line)
            if I.mn == "s_nop":
                self.pos += int(line.split()[1]) + 1
            else:
                self.pos += 1
            self.hist.append(I)
            if len(self.hist) > 64: self.hist = self.hist[-48:]
    def flush(self, n=20):
        if not self.hist: return
        pad = 0
        for P in reversed(self.hist):
            dist = self.pos - P.pos - 1
            if dist >= 20: break
            w = 0
            if P.cls == "mfma": w = T_D2X[P.passes]
            elif P.cls == "valu": w = 5 if any(r[0] in ('s', 'vcc') for r in P.dst) else 2
            elif P.cls == "vmem" and P.storedata: w = 2
            elif P.cls == "salu" and ('m0', 0) in P.dst: w = 1
            pad = max(pad, w - dist)
        while pad > 0:
            k = min(pad, 16)
            self.lines.append(f"    s_nop {k-1}")
            self.pos += k; pad -= k
    def text(self):
        return "\n".join(self.lines) + "\n"

def descriptor(name, nvgpr, nsgpr, lds_fixed=0):
    nv = (nvgpr + 3) // 4 * 4
    return f""".section .rodata,"a"
.p2align 6
.amdhsa_kernel {name}
  .amdhsa_next_free_vgpr {nvgpr}
  .amdhsa_next_free_sgpr {nsgpr}
  .amdhsa_accum_offset {nv}
  .amdhsa_group_segment_fixed_size 0
  .amdhsa_kernarg_size 104
  .amdhsa_user_sgpr_count 2
  .amdhsa_user_sgpr_kernarg_segment_ptr 1
  .amdhsa_system_sgpr_workgroup_id_x 1
  .amdhsa_float_denorm_mode_32 3
  .amdhsa_float_denorm_mode_16_64 3
.end_amdhsa_kernel
.text
"""
```

```python
WS_Q   = 0x000000
WS_K   = 0x200000
WS_VT  = 0x400000
WS_KVT = 0x600000
WS_ZT  = 0x800000
WS_O   = 0xA00000
WS_G   = 0xC00000
WS_END = 0xC10000
KA_X, KA_K, KA_V, KA_SH, KA_SSMK, KA_SSMD, KA_BX, KA_WQKV, KA_WO, KA_GW, KA_OUT, KA_DBG, KA_WS = [8*i for i in range(13)]
LOG2E = 1.4426950408889634

def srd(K, sbase, ptr_lo, nbytes):
    K(f"s_mov_b32 s{sbase}, s{ptr_lo}")
    K(f"s_and_b32 s{sbase+1}, s{ptr_lo+1}, 0xffff")
    K(f"s_mov_b32 s{sbase+2}, {nbytes}")
    K(f"s_mov_b32 s{sbase+3}, 0x00020000")

def rnd2(K, a, b, t):
    K(f"v_cvt_pk_bf16_f32 v{t}, v{a}, v{b}")
    K(f"v_lshlrev_b32 v{a}, 16, v{t}")
    K(f"v_and_b32 v{b}, 0xffff0000, v{t}")

def unpack(K, dst, src, half):
    if half == 0: K(f"v_lshlrev_b32 v{dst}, 16, v{src}")
    else: K(f"v_and_b32 v{dst}, 0xffff0000, v{src}")
```

```python
from asmlib import *
from common import *

class GemmCfg:
    pass

def gemm_core(K, V, S, c):
    BM, BN, NS = c.BM, c.BN, c.NS
    MT, NT = BM // 64, BN // 64
    RB = BN * 2
    ABYTES, BBYTES = BM * 128, 64 * RB
    SLOT = ABYTES + BBYTES
    nA = BM // 32
    nB = RB // 64
    per_stage = nA + nB
    NST = 8
    PRE = NS - 1 if NS < NST else NST
    lane = c.v_lane
    s_wm = S.alloc(); s_wn = S.alloc()
    K(f"s_lshr_b32 s{s_wm}, s{c.s_w}, 1")
    K(f"s_and_b32 s{s_wn}, s{c.s_w}, 1")
    voffA = [V.alloc(), V.alloc()]; voffB = V.alloc()
    t0 = V.alloc(); t1 = V.alloc()
    for par in range(2):
        K(f"v_lshrrev_b32 v{t0}, 4, v{lane}")
        if par: K(f"v_add_u32 v{t0}, 4, v{t0}")
        K(f"v_and_b32 v{t0}, 7, v{t0}")
        K(f"v_and_b32 v{t1}, 7, v{lane}")
        K(f"v_xor_b32 v{t0}, v{t0}, v{t1}")
        K(f"v_lshlrev_b32 v{t0}, 4, v{t0}")
        K(f"v_lshrrev_b32 v{t1}, 3, v{lane}")
        K(f"v_lshl_add_u32 v{voffA[par]}, v{t1}, 10, v{t0}")
    if RB == 256:
        K(f"v_lshrrev_b32 v{t0}, 4, v{lane}")
        K(f"v_lshlrev_b32 v{t1}, 2, v{t0}")
        K(f"v_and_b32 v{voffB}, 15, v{lane}")
        K(f"v_xor_b32 v{voffB}, v{voffB}, v{t1}")
        K(f"v_lshlrev_b32 v{voffB}, 4, v{voffB}")
    else:
        K(f"v_lshrrev_b32 v{t0}, 3, v{lane}")
        K(f"v_lshrrev_b32 v{t1}, 4, v{lane}")
        K(f"v_and_b32 v{t1}, 1, v{t1}")
        K(f"v_lshlrev_b32 v{t1}, 2, v{t1}")
        K(f"v_and_b32 v{voffB}, 7, v{lane}")
        K(f"v_xor_b32 v{voffB}, v{voffB}, v{t1}")
        K(f"v_lshlrev_b32 v{voffB}, 4, v{voffB}")
    s_str = S.alloc()
    K(f"s_mov_b32 s{s_str}, {c.strideB}")
    K(f"v_mul_lo_u32 v{t0}, v{t0}, s{s_str}")
    K(f"v_add_u32 v{voffB}, v{voffB}, v{t0}")
    sA_w = S.alloc(); sB_w = S.alloc(); s_wlds = S.alloc(); s_tmp = S.alloc()
    rowsB = 1024 // RB
    K(f"s_mul_i32 s{sA_w}, s{c.s_w}, {nA*8*1024}")
    K(f"s_add_u32 s{sA_w}, s{sA_w}, s{c.sA}")
    K(f"s_mul_i32 s{sB_w}, s{c.s_w}, {nB*rowsB*c.strideB}")
    K(f"s_add_u32 s{sB_w}, s{sB_w}, s{c.sB}")
    assert nA == nB
    K(f"s_lshl_b32 s{s_wlds}, s{c.s_w}, {10 + (nA.bit_length()-1)}")
    def issue_stage(t):
        slot = t % NS
        for j in range(nA):
            K(f"s_add_u32 s{s_tmp}, s{sA_w}, {j*8192 + t*128}")
            K(f"s_add_u32 m0, s{s_wlds}, {c.lds_base + slot*SLOT + j*1024}")
            K(f"buffer_load_dwordx4 v{voffA[j&1]}, {sr(c.srdA,4)}, s{s_tmp} offen lds")
        for j in range(nB):
            K(f"s_add_u32 s{s_tmp}, s{sB_w}, {(j*rowsB + t*64)*c.strideB}")
            K(f"s_add_u32 m0, s{s_wlds}, {c.lds_base + slot*SLOT + ABYTES + j*1024}")
            K(f"buffer_load_dwordx4 v{voffB}, {sr(c.srdB,4)}, s{s_tmp} offen lds")
    aoff = [V.alloc() for _ in range(4)]
    boff = [V.alloc() for _ in range(NT)]
    l32 = V.alloc(); hh = V.alloc()
    K(f"v_and_b32 v{l32}, 31, v{lane}")
    K(f"v_lshrrev_b32 v{hh}, 5, v{lane}")
    K(f"v_lshrrev_b32 v{t0}, 1, v{lane}")
    K(f"v_and_b32 v{t0}, 7, v{t0}")
    K(f"s_mul_i32 s{s_tmp}, s{s_wm}, {(BM//2)*128}")
    K(f"s_add_u32 s{s_tmp}, s{s_tmp}, {c.lds_base}")
    for ks in range(4):
        K(f"v_add_u32 v{t1}, {2*ks}, v{hh}")
        K(f"v_xor_b32 v{t1}, v{t1}, v{t0}")
        K(f"v_lshlrev_b32 v{t1}, 4, v{t1}")
        K(f"v_lshl_add_u32 v{aoff[ks]}, v{l32}, 7, v{t1}")
        K(f"v_add_u32 v{aoff[ks]}, s{s_tmp}, v{aoff[ks]}")
    g = V.alloc(); r_ = V.alloc(); cp = V.alloc(); low = V.alloc()
    K(f"v_lshrrev_b32 v{g}, 4, v{lane}")
    K(f"v_and_b32 v{cp}, 15, v{lane}")
    K(f"v_lshrrev_b32 v{r_}, 2, v{cp}")
    K(f"v_and_b32 v{cp}, 3, v{cp}")
    K(f"v_and_b32 v{low}, 1, v{g}")
    K(f"v_lshlrev_b32 v{low}, 1, v{low}")
    K(f"v_lshrrev_b32 v{t0}, 1, v{cp}")
    K(f"v_add_u32 v{low}, v{low}, v{t0}")
    for cb in range(NT):
        if RB == 256:
            K(f"s_lshl_b32 s{s_tmp}, s{s_wn}, 1")
            K(f"s_add_u32 s{s_tmp}, s{s_tmp}, {cb}")
            K(f"v_xor_b32 v{t0}, s{s_tmp}, v{r_}")
        else:
            K(f"v_lshrrev_b32 v{t0}, 1, v{r_}")
            K(f"v_xor_b32 v{t0}, s{s_wn}, v{t0}")
        K(f"v_lshl_add_u32 v{t0}, v{t0}, 2, v{low}")
        K(f"v_lshlrev_b32 v{t0}, 4, v{t0}")
        K(f"v_and_b32 v{t1}, 1, v{cp}")
        K(f"v_lshl_add_u32 v{t0}, v{t1}, 3, v{t0}")
        K(f"v_lshrrev_b32 v{t1}, 1, v{g}")
        K(f"v_lshl_add_u32 v{t1}, v{t1}, 3, v{r_}")
        K(f"v_mul_u32_u24 v{t1}, {RB}, v{t1}")
        K(f"v_add_u32 v{boff[cb]}, v{t0}, v{t1}")
        K(f"v_add_u32 v{boff[cb]}, {c.lds_base + ABYTES}, v{boff[cb]}")
    for x in (g, r_, cp, low, t0, t1): V.free(x)
    acc = [[V.alloc(16, 4) for _ in range(NT)] for _ in range(MT)]
    for rb in range(MT):
        for cb in range(NT):
            for i in range(16): K(f"v_mov_b32 v{acc[rb][cb]+i}, 0")
    fA = [[V.alloc(4, 4) for _ in range(MT)] for _ in range(2)]
    fB = [[V.alloc(4, 4) for _ in range(NT)] for _ in range(2)]
    for t in range(PRE): issue_stage(t)
    cur_slot_off = 0
    for t in range(NST):
        issued = min(NST, t + PRE)
        K(f"s_waitcnt vmcnt({(issued - t - 1) * per_stage})")
        K("s_barrier")
        if t + PRE < NST and NS < NST: issue_stage(t + PRE)
        want = (t % NS) * SLOT
        if want != cur_slot_off:
            d = want - cur_slot_off
            for a in aoff + boff:
                K(f"v_add_u32 v{a}, {d & 0xffffffff}, v{a}")
            cur_slot_off = want
        def read_frags(ks, buf):
            for rb in range(MT):
                K(f"ds_read_b128 {vr(fA[buf][rb],4)}, v{aoff[ks]} offset:{rb*4096}")
            for cb in range(NT):
                for tt in range(2):
                    K(f"ds_read_b64_tr_b16 {vr(fB[buf][cb]+2*tt,2)}, v{boff[cb]} offset:{(16*ks + 4*tt)*RB}")
        nrd = MT + 2 * NT
        read_frags(0, 0)
        for ks in range(4):
            buf = ks & 1
            if ks < 3:
                read_frags(ks + 1, buf ^ 1)
                K(f"s_waitcnt lgkmcnt({nrd})")
            else:
                K("s_waitcnt lgkmcnt(0)")
            for rb in range(MT):
                for cb in range(NT):
                    a, b = vr(fA[buf][rb], 4), vr(fB[buf][cb], 4)
                    if c.form == 'sn': K(f"v_mfma_f32_32x32x16_bf16 {vr(acc[rb][cb],16)}, {a}, {b}, {vr(acc[rb][cb],16)}")
                    else:              K(f"v_mfma_f32_32x32x16_bf16 {vr(acc[rb][cb],16)}, {b}, {a}, {vr(acc[rb][cb],16)}")
    for x in aoff + boff + voffA + [voffB]: V.free(x)
    for bb in fA + fB:
        for x in bb: V.free(x, 4)
    return acc, s_wm, s_wn, l32, hh
```

```python
from asmlib import *
from common import *
from gemm import *

N_GEMM_WG = 192
N_PREP_WG = 128
L1_LDS = 3 * 32768

def gen_l1():
    K = Kern("k1_qkv_prep_kernel")
    V = RA(1, 128); S = RA(3, 100)
    K.raw(".globl k1_qkv_prep_kernel\n.p2align 8\n.type k1_qkv_prep_kernel,@function\nk1_qkv_prep_kernel:")
    L_prep, L_end = K.newlabel("prep"), K.newlabel("end")
    pX, pW, pWS, pK, pV, pSH, pGW = [S.alloc(2, 2) for _ in range(7)]
    for p, off in ((pX, KA_X), (pW, KA_WQKV), (pWS, KA_WS), (pK, KA_K), (pV, KA_V), (pSH, KA_SH), (pGW, KA_GW)):
        K(f"s_load_dwordx2 {sr(p,2)}, s[0:1], {off}")
    lane = V.alloc(); s_w = S.alloc()
    K(f"v_lshrrev_b32 v{lane}, 6, v0")
    K(f"v_readfirstlane_b32 s{s_w}, v{lane}")
    K(f"v_and_b32 v{lane}, 63, v0")
    K("s_waitcnt lgkmcnt(0)")
    srdX, srdW, srdWS = S.alloc(4, 4), S.alloc(4, 4), S.alloc(4, 4)
    srd(K, srdX, pX, 2048*512*2)
    srd(K, srdWS, pWS, WS_END)
    K(f"s_cmp_ge_u32 s2, {N_GEMM_WG}")
    K(f"s_cbranch_scc1 {L_prep}")
    srd(K, srdW, pW, 512*1536*2)
    s_mt, s_nt, s_s0, s_n0 = S.alloc(), S.alloc(), S.alloc(), S.alloc()
    K(f"s_and_b32 s{s_mt}, s2, 15")
    K(f"s_lshr_b32 s{s_nt}, s2, 4")
    K(f"s_lshl_b32 s{s_s0}, s{s_mt}, 7")
    K(f"s_lshl_b32 s{s_n0}, s{s_nt}, 7")
    sA, sB = S.alloc(), S.alloc()
    K(f"s_lshl_b32 s{sA}, s{s_s0}, 10")
    K(f"s_lshl_b32 s{sB}, s{s_n0}, 1")
    L_vtype = K.newlabel("vtype")
    K(f"s_cmp_ge_u32 s{s_nt}, 8")
    K(f"s_cbranch_scc1 {L_vtype}")
    def run(form):
        c = GemmCfg()
        c.BM, c.BN, c.NS = 128, 128, 3
        c.srdA, c.srdB, c.strideB = srdX, srdW, 3072
        c.sA, c.sB, c.s_w, c.v_lane, c.form, c.lds_base = sA, sB, s_w, lane, form, 0
        Vs = V.used[:]; Ss = S.used[:]
        acc, s_wm, s_wn, l32, hh = gemm_core(K, V, S, c)
        st = V.alloc(); sE = S.alloc(); s_t = S.alloc(); s_t2 = S.alloc()
        pk = V.alloc(2, 2)
        if form == 'ns':
            K(f"v_lshlrev_b32 v{st}, 5, v{l32}")
            K(f"v_lshl_add_u32 v{st}, v{hh}, 3, v{st}")
            K(f"s_lshr_b32 s{s_t}, s{s_nt}, 2")
            K(f"s_lshl_b32 s{sE}, s{s_t}, 21")
            K(f"s_and_b32 s{s_t}, s{s_n0}, 511")
            K(f"s_lshl_b32 s{s_t}, s{s_t}, 12")
            K(f"s_add_u32 s{sE}, s{sE}, s{s_t}")
            K(f"s_lshl_b32 s{s_t}, s{s_wm}, 6")
            K(f"s_add_u32 s{s_t}, s{s_t}, s{s_s0}")
            K(f"s_lshl_b32 s{s_t}, s{s_t}, 5")
            K(f"s_add_u32 s{sE}, s{sE}, s{s_t}")
            K(f"s_lshl_b32 s{s_t}, s{s_wn}, 18")
            K(f"s_add_u32 s{sE}, s{sE}, s{s_t}")
            for cb in range(2):
                for rb in range(2):
                    for g in range(4):
                        a = acc[rb][cb] + 4*g
                        K(f"v_cvt_pk_bf16_f32 v{pk}, v{a}, v{a+1}")
                        K(f"v_cvt_pk_bf16_f32 v{pk+1}, v{a+2}, v{a+3}")
                        K(f"s_add_u32 s{s_t2}, s{sE}, {(cb*2 + (g>>1))*65536}")
                        K(f"buffer_store_dwordx2 {vr(pk,2)}, v{st}, {sr(srdWS,4)}, s{s_t2} offen offset:{rb*1024 + (g&1)*16}")
        else:
            t0 = V.alloc()
            K(f"v_lshlrev_b32 v{st}, 12, v{l32}")
            K(f"v_lshl_add_u32 v{st}, v{hh}, 4, v{st}")
            V.free(t0)
            K(f"s_and_b32 s{s_t}, s{s_n0}, 511")
            K(f"s_lshl_b32 s{sE}, s{s_t}, 12")
            K(f"s_add_u32 s{sE}, s{sE}, {WS_VT}")
            K(f"s_lshl_b32 s{s_t}, s{s_wm}, 6")
            K(f"s_add_u32 s{s_t}, s{s_t}, s{s_s0}")
            K(f"s_lshl_b32 s{s_t}, s{s_t}, 1")
            K(f"s_add_u32 s{sE}, s{sE}, s{s_t}")
            K(f"s_lshl_b32 s{s_t}, s{s_wn}, 18")
            K(f"s_add_u32 s{sE}, s{sE}, s{s_t}")
            for cb in range(2):
                for rb in range(2):
                    for g in range(4):
                        a = acc[rb][cb] + 4*g
                        K(f"v_cvt_pk_bf16_f32 v{pk}, v{a}, v{a+1}")
                        K(f"v_cvt_pk_bf16_f32 v{pk+1}, v{a+2}, v{a+3}")
                        K(f"s_add_u32 s{s_t2}, s{sE}, {cb*2*65536}")
                        K(f"buffer_store_dwordx2 {vr(pk,2)}, v{st}, {sr(srdWS,4)}, s{s_t2} offen offset:{rb*64 + (g>>1)*32 + (g&1)*8}")
        K("s_endpgm")
        V.used = Vs; S.used = Ss
    run('ns')
    K.label(L_vtype); K.hist = []
    run('sn')
    K.label(L_prep); K.hist = []
    K(f"s_cmp_ge_u32 s2, {N_GEMM_WG + N_PREP_WG}")
    K(f"s_cbranch_scc1 {L_end}")
    srdK, srdV, srdSH, srdGW = S.alloc(4,4), S.alloc(4,4), S.alloc(4,4), S.alloc(4,4)
    srd(K, srdK, pK, 2048*512*2); srd(K, srdV, pV, 2048*512*2); srd(K, srdSH, pSH, 512*4*2); srd(K, srdGW, pGW, 512*2)
    s_r0 = S.alloc(); s_t = S.alloc()
    K(f"s_sub_u32 s{s_r0}, s2, {N_GEMM_WG}")
    K(f"s_lshl_b32 s{s_r0}, s{s_r0}, 4")
    K(f"s_lshl_b32 s{s_t}, s{s_w}, 2")
    K(f"s_add_u32 s{s_r0}, s{s_r0}, s{s_t}")
    l16 = V.alloc()
    K(f"v_lshlrev_b32 v{l16}, 4, v{lane}")
    kraw = [V.alloc(4,4) for _ in range(7)]; vraw = [V.alloc(4,4) for _ in range(4)]; xraw = [V.alloc(4,4) for _ in range(4)]
    shraw = V.alloc(16, 4); gwraw = V.alloc(4, 4)
    l64 = V.alloc()
    K(f"v_lshlrev_b32 v{l64}, 6, v{lane}")
    for i in range(4):
        K(f"buffer_load_dwordx4 {vr(shraw+4*i,4)}, v{l64}, {sr(srdSH,4)}, 0 offen offset:{16*i}")
    K(f"buffer_load_dwordx4 {vr(gwraw,4)}, v{l16}, {sr(srdGW,4)}, 0 offen")
    s_ro = S.alloc()
    K(f"s_lshl_b32 s{s_ro}, s{s_r0}, 10")
    for i in range(3):
        for j in range(4): K(f"v_mov_b32 v{kraw[i]+j}, 0")
    L_skip = K.newlabel("skiphalo")
    K(f"s_cmp_eq_u32 s{s_r0}, 0")
    K(f"s_cbranch_scc1 {L_skip}")
    K(f"s_sub_u32 s{s_t}, s{s_ro}, 3072")
    for i in range(3):
        K(f"buffer_load_dwordx4 {vr(kraw[i],4)}, v{l16}, {sr(srdK,4)}, s{s_t} offen offset:{i*1024}")
    K.label(L_skip); K.hist = []
    for i in range(4):
        K(f"buffer_load_dwordx4 {vr(kraw[3+i],4)}, v{l16}, {sr(srdK,4)}, s{s_ro} offen offset:{i*1024}")
        K(f"buffer_load_dwordx4 {vr(vraw[i],4)}, v{l16}, {sr(srdV,4)}, s{s_ro} offen offset:{i*1024}")
        K(f"buffer_load_dwordx4 {vr(xraw[i],4)}, v{l16}, {sr(srdX,4)}, s{s_ro} offen offset:{i*1024}")
    vkvt = V.alloc()
    K(f"v_lshlrev_b32 v{vkvt}, 15, v{lane}")
    s_kvt = S.alloc()
    K(f"s_lshl_b32 s{s_t}, s{s_r0}, 1")
    K(f"s_sub_u32 s{s_kvt}, {WS_KVT + 2044*2}, s{s_t}")
    K("s_waitcnt vmcnt(0)")
    kf = [V.alloc() for _ in range(7)]; vf = [V.alloc() for _ in range(4)]; wv = [V.alloc() for _ in range(4)]
    accv = [V.alloc() for _ in range(4)]; tmp = [V.alloc() for _ in range(4)]; tt = V.alloc()
    gs = [V.alloc() for _ in range(4)]; xf = [V.alloc() for _ in range(4)]; gwf = V.alloc()
    outp = V.alloc(2, 2)
    for r in range(4): K(f"v_mov_b32 v{gs[r]}, 0")
    for e in range(8):
        dw, hf = e >> 1, e & 1
        for i in range(7): unpack(K, kf[i], kraw[i] + dw, hf)
        for r in range(4): unpack(K, vf[r], vraw[r] + dw, hf)
        unpack(K, wv[0], shraw + 2*e, 0); unpack(K, wv[1], shraw + 2*e, 1)
        unpack(K, wv[2], shraw + 2*e + 1, 0); unpack(K, wv[3], shraw + 2*e + 1, 1)
        for r in range(4): K(f"v_mul_f32 v{accv[r]}, v{kf[r]}, v{wv[3]}")
        rnd2(K, accv[0], accv[1], tt); rnd2(K, accv[2], accv[3], tt)
        for tap in (2, 1, 0):
            for r in range(4): K(f"v_mul_f32 v{tmp[r]}, v{kf[r + 3 - tap]}, v{wv[tap]}")
            rnd2(K, tmp[0], tmp[1], tt); rnd2(K, tmp[2], tmp[3], tt)
            for r in range(4): K(f"v_add_f32 v{accv[r]}, v{accv[r]}, v{tmp[r]}")
            rnd2(K, accv[0], accv[1], tt); rnd2(K, accv[2], accv[3], tt)
        for r in range(4): K(f"v_mul_f32 v{accv[r]}, v{accv[r]}, v{vf[r]}")
        K(f"v_cvt_pk_bf16_f32 v{outp}, v{accv[3]}, v{accv[2]}")
        K(f"v_cvt_pk_bf16_f32 v{outp+1}, v{accv[1]}, v{accv[0]}")
        K(f"s_add_u32 s{s_t}, s{s_kvt}, {e*4096}")
        K(f"buffer_store_dwordx2 {vr(outp,2)}, v{vkvt}, {sr(srdWS,4)}, s{s_t} offen")
        unpack(K, gwf, gwraw + dw, hf)
        for r in range(4):
            unpack(K, xf[r], xraw[r] + dw, hf)
            K(f"v_mul_f32 v{xf[r]}, v{xf[r]}, v{gwf}")
        rnd2(K, xf[0], xf[1], tt); rnd2(K, xf[2], xf[3], tt)
        for r in range(4): K(f"v_add_f32 v{gs[r]}, v{gs[r]}, v{xf[r]}")
    for off in (0x041F, 0x081F, 0x101F, 0x201F, 0x401F):
        for r in range(4): K(f"ds_swizzle_b32 v{tmp[r]}, v{gs[r]} offset:{off}")
        K("s_waitcnt lgkmcnt(0)")
        for r in range(4): K(f"v_add_f32 v{gs[r]}, v{gs[r]}, v{tmp[r]}")
    s_h = [S.alloc() for _ in range(4)]
    for r in range(4): K(f"v_readlane_b32 s{s_h[r]}, v{gs[r]}, 32")
    for r in range(4): K(f"v_add_f32 v{gs[r]}, s{s_h[r]}, v{gs[r]}")
    rnd2(K, gs[0], gs[1], tt); rnd2(K, gs[2], gs[3], tt)
    for r in range(4):
        K(f"v_mul_f32 v{gs[r]}, {hex(f32bits(-LOG2E))}, v{gs[r]}")
        K(f"v_exp_f32 v{gs[r]}, v{gs[r]}")
    for r in range(4):
        K(f"v_add_f32 v{gs[r]}, 1.0, v{gs[r]}")
        K(f"v_rcp_f32 v{gs[r]}, v{gs[r]}")
    rnd2(K, gs[0], gs[1], tt); rnd2(K, gs[2], gs[3], tt)
    gq = V.alloc(4, 4)
    for r in range(4): K(f"v_mov_b32 v{gq+r}, v{gs[r]}")
    vz = V.alloc()
    K(f"v_mov_b32 v{vz}, 0")
    K(f"s_lshl_b32 s{s_t}, s{s_r0}, 2")
    K(f"s_add_u32 s{s_t}, s{s_t}, {WS_G}")
    K("s_mov_b64 exec, 1")
    K(f"buffer_store_dwordx4 {vr(gq,4)}, v{vz}, {sr(srdWS,4)}, s{s_t} offen")
    K.label(L_end); K.hist = []
    K("s_endpgm")
    return K, V.maxused + 1, S.maxused + 1

import struct
def f32bits(x): return struct.unpack("<I", struct.pack("<f", x))[0]
```

```python
from asmlib import *
from common import *
import struct
def f32bits(x): return struct.unpack("<I", struct.pack("<f", x))[0]

LK = 0
LV = 65536
VROW = 4112
LCONV = LV + 16 * VROW
CONV_U, CONV_H0, CONV_H1, CONV_SZ = 0, 6144, 6144 + 4224, 6144 + 2 * 4224
L2_LDS = LCONV + 2 * CONV_SZ
TAU = 10.0
QSCALE = 0.25 * LOG2E

def gen_l2():
    K = Kern("k2_attn_conv_kernel")
    V = RA(1, 128); S = RA(3, 100)
    K.raw(".globl k2_attn_conv_kernel\n.p2align 8\n.type k2_attn_conv_kernel,@function\nk2_attn_conv_kernel:")
    L_conv, L_end = K.newlabel("conv"), K.newlabel("end")
    K("s_cmp_ge_u32 s2, 256")
    K(f"s_cbranch_scc1 {L_end}")
    pWS, pSK, pSD = S.alloc(2,2), S.alloc(2,2), S.alloc(2,2)
    K(f"s_load_dwordx2 {sr(pWS,2)}, s[0:1], {KA_WS}")
    K(f"s_load_dwordx2 {sr(pSK,2)}, s[0:1], {KA_SSMK}")
    K(f"s_load_dwordx2 {sr(pSD,2)}, s[0:1], {KA_SSMD}")
    lane = V.alloc(); s_w = S.alloc()
    K(f"v_lshrrev_b32 v{lane}, 6, v0")
    K(f"v_readfirstlane_b32 s{s_w}, v{lane}")
    K(f"v_and_b32 v{lane}, 63, v0")
    l32 = V.alloc(); hh = V.alloc(); l16x = V.alloc()
    K(f"v_and_b32 v{l32}, 31, v{lane}")
    K(f"v_lshrrev_b32 v{hh}, 5, v{lane}")
    K(f"v_lshlrev_b32 v{l16x}, 4, v{lane}")
    K("s_waitcnt lgkmcnt(0)")
    srdWS = S.alloc(4, 4)
    srd(K, srdWS, pWS, WS_END)
    K(f"s_cmp_ge_u32 s{s_w}, 8")
    K(f"s_cbranch_scc1 {L_conv}")
    s_h, s_qb, s_t, s_t2 = S.alloc(), S.alloc(), S.alloc(), S.alloc()
    K(f"s_and_b32 s{s_h}, s2, 31")
    K(f"s_lshr_b32 s{s_qb}, s2, 5")
    Qf = V.alloc(4, 4); vt = V.alloc()
    K(f"v_lshlrev_b32 v{vt}, 5, v{l32}")
    K(f"v_lshl_add_u32 v{vt}, v{hh}, 4, v{vt}")
    K(f"s_lshl_b32 s{s_t}, s{s_h}, 16")
    K(f"s_lshl_b32 s{s_t2}, s{s_qb}, 13")
    K(f"s_add_u32 s{s_t}, s{s_t}, s{s_t2}")
    K(f"s_lshl_b32 s{s_t2}, s{s_w}, 10")
    K(f"s_add_u32 s{s_t}, s{s_t}, s{s_t2}")
    K(f"s_add_u32 s{s_t}, s{s_t}, {WS_Q}")
    K(f"buffer_load_dwordx4 {vr(Qf,4)}, v{vt}, {sr(srdWS,4)}, s{s_t} offen")
    s_kb, s_vb, s_wl = S.alloc(), S.alloc(), S.alloc()
    K(f"s_lshl_b32 s{s_kb}, s{s_h}, 16")
    K(f"s_add_u32 s{s_kb}, s{s_kb}, {WS_K}")
    K(f"s_lshl_b32 s{s_t}, s{s_w}, 11")
    K(f"s_add_u32 s{s_kb}, s{s_kb}, s{s_t}")
    K(f"s_lshl_b32 s{s_vb}, s{s_h}, 16")
    K(f"s_add_u32 s{s_vb}, s{s_vb}, {WS_VT}")
    K(f"s_lshl_b32 s{s_t}, s{s_w}, 13")
    K(f"s_add_u32 s{s_vb}, s{s_vb}, s{s_t}")
    K(f"s_lshl_b32 s{s_wl}, s{s_w}, 11")
    s_wv = S.alloc()
    K(f"s_mul_i32 s{s_wv}, s{s_w}, {2*VROW}")
    for c in range(4):
        for i in range(2):
            K(f"s_add_u32 s{s_t}, s{s_kb}, {c*16384 + i*1024}")
            K(f"s_add_u32 m0, s{s_wl}, {LK + c*16384 + i*1024}")
            K(f"buffer_load_dwordx4 v{l16x}, {sr(srdWS,4)}, s{s_t} offen lds")
        for i in range(2):
            K(f"s_add_u32 s{s_t}, s{s_vb}, {i*4096 + c*1024}")
            K(f"s_add_u32 m0, s{s_wv}, {LV + i*VROW + c*1024}")
            K(f"buffer_load_dwordx4 v{l16x}, {sr(srdWS,4)}, s{s_t} offen lds")
    Cm = V.alloc(16, 4); O = V.alloc(16, 4); Sa = V.alloc(16, 4); Sb = V.alloc(16, 4)
    Kf = [V.alloc(4, 4), V.alloc(4, 4)]
    Vf = [[V.alloc(4, 4), V.alloc(4, 4)], [V.alloc(4, 4), V.alloc(4, 4)]]
    P = V.alloc(8, 4)
    kaddr, vaddr, mx, t1, t2 = V.alloc(), V.alloc(), V.alloc(), V.alloc(), V.alloc()
    for i in range(16): K(f"v_mov_b32 v{O+i}, 0")
    K(f"v_cmp_eq_u32 vcc, 16, v{l32}")
    K(f"v_mov_b32 v{t1}, 0x3f803f80")
    K(f"v_cndmask_b32 v{t2}, 0, v{t1}, vcc")
    for b in range(2):
        for j in range(2):
            for i in range(4): K(f"v_mov_b32 v{Vf[b][j]+i}, v{t2}")
    K(f"v_lshlrev_b32 v{kaddr}, 5, v{l32}")
    K(f"v_lshl_add_u32 v{kaddr}, v{hh}, 4, v{kaddr}")
    s_vr = S.alloc()
    K(f"s_mov_b32 s{s_vr}, {VROW}")
    K(f"v_mul_lo_u32 v{vaddr}, v{l32}, s{s_vr}")
    K(f"v_lshl_add_u32 v{vaddr}, v{hh}, 4, v{vaddr}")
    K(f"v_add_u32 v{vaddr}, {LV}, v{vaddr}")
    s_vm = S.alloc(2, 2)
    K(f"s_mov_b32 s{s_vm}, 0x0000ffff")
    K(f"s_mov_b32 s{s_vm+1}, 0x0000ffff")
    K("s_waitcnt vmcnt(16)")
    qa = [V.alloc() for _ in range(2)]
    for i in range(4):
        unpack(K, qa[0], Qf + i, 0); unpack(K, qa[1], Qf + i, 1)
        K(f"v_mul_f32 v{qa[0]}, {hex(f32bits(QSCALE))}, v{qa[0]}")
        K(f"v_mul_f32 v{qa[1]}, {hex(f32bits(QSCALE))}, v{qa[1]}")
        K(f"v_cvt_pk_bf16_f32 v{Qf+i}, v{qa[0]}, v{qa[1]}")
    for x in qa: V.free(x)
    K("s_waitcnt vmcnt(12)")
    K("s_barrier")
    K(f"ds_read_b128 {vr(Kf[0],4)}, v{kaddr}")
    for i in range(16): K(f"v_mov_b32 v{Cm+i}, 0")
    K("s_waitcnt lgkmcnt(0)")
    K(f"v_mfma_f32_32x32x16_bf16 {vr(Sa,16)}, {vr(Kf[0],4)}, {vr(Qf,4)}, {vr(Cm,16)}")
    def maxchain(Sx):
        K(f"v_max3_f32 v{mx}, v{Sx}, v{Sx+1}, v{Sx+2}")
        for i in range(3, 15, 2): K(f"v_max3_f32 v{mx}, v{mx}, v{Sx+i}, v{Sx+i+1}")
        K(f"v_max_f32 v{mx}, v{mx}, v{Sx+15}")
    def fullmax():
        K(f"v_mov_b32 v{t1}, v{mx}")
        K(f"v_mov_b32 v{t2}, v{mx}")
        K(f"v_permlane32_swap_b32 v{t1}, v{t2}")
        K(f"v_max_f32 v{mx}, v{t1}, v{t2}")
    maxchain(Sa); fullmax()
    for i in range(16): K(f"v_sub_f32 v{Cm+i}, 0, v{mx}")
    K(f"v_mfma_f32_32x32x16_bf16 {vr(Sa,16)}, {vr(Kf[0],4)}, {vr(Qf,4)}, {vr(Cm,16)}")
    K(f"ds_read_b128 {vr(Kf[1],4)}, v{kaddr} offset:1024")
    K(f"s_mov_b64 exec, {sr(s_vm,2)}")
    K(f"ds_read_b128 {vr(Vf[0][0],4)}, v{vaddr}")
    K(f"ds_read_b128 {vr(Vf[0][1],4)}, v{vaddr} offset:32")
    K("s_mov_b64 exec, -1")
    s_it = S.alloc()
    rare_blocks = []
    def half(Scur, Snext, Kn, Kp, Vc, Vn, koff, voff):
        L_rare, L_cont = K.newlabel("rare"), K.newlabel("cont")
        K("s_waitcnt lgkmcnt(2)")
        K(f"v_mfma_f32_32x32x16_bf16 {vr(Snext,16)}, {vr(Kn,4)}, {vr(Qf,4)}, {vr(Cm,16)}")
        K(f"ds_read_b128 {vr(Kp,4)}, v{kaddr} offset:{koff}")
        K(f"s_mov_b64 exec, {sr(s_vm,2)}")
        K(f"ds_read_b128 {vr(Vn[0],4)}, v{vaddr} offset:{voff}")
        K(f"ds_read_b128 {vr(Vn[1],4)}, v{vaddr} offset:{voff+32}")
        K("s_mov_b64 exec, -1")
        maxchain(Scur)
        K(f"v_cmp_lt_f32 vcc, {hex(f32bits(TAU))}, v{mx}")
        K(f"s_cbranch_vccnz {L_rare}")
        K.label(L_cont)
        for i in range(8): K(f"v_exp_f32 v{Scur+i}, v{Scur+i}")
        for i in range(4): K(f"v_cvt_pk_bf16_f32 v{P+i}, v{Scur+2*i}, v{Scur+2*i+1}")
        K(f"v_exp_f32 v{Scur+8}, v{Scur+8}")
        K(f"v_exp_f32 v{Scur+9}, v{Scur+9}")
        K("s_waitcnt lgkmcnt(3)")
        K(f"v_mfma_f32_32x32x16_bf16 {vr(O,16)}, {vr(Vc[0],4)}, {vr(P,4)}, {vr(O,16)}")
        for i in range(10, 16): K(f"v_exp_f32 v{Scur+i}, v{Scur+i}")
        for i in range(4, 8): K(f"v_cvt_pk_bf16_f32 v{P+i}, v{Scur+2*i}, v{Scur+2*i+1}")
        K(f"v_mfma_f32_32x32x16_bf16 {vr(O,16)}, {vr(Vc[1],4)}, {vr(P+4,4)}, {vr(O,16)}")
        rare_blocks.append((L_rare, L_cont, Scur, Snext))
    def loop(n_iter):
        L = K.newlabel("loop")
        K(f"s_mov_b32 s{s_it}, 0")
        K.label(L)
        half(Sa, Sb, Kf[1], Kf[0], Vf[0], Vf[1], 2048, 64)
        half(Sb, Sa, Kf[0], Kf[1], Vf[1], Vf[0], 3072, 128)
        K(f"v_add_u32 v{kaddr}, 2048, v{kaddr}")
        K(f"v_add_u32 v{vaddr}, 128, v{vaddr}")
        K(f"s_add_u32 s{s_it}, s{s_it}, 1")
        K(f"s_cmp_lt_u32 s{s_it}, {n_iter}")
        K(f"s_cbranch_scc1 {L}")
    loop(7)
    K("s_waitcnt vmcnt(0)")
    K("s_barrier")
    loop(25)
    K.flush()
    K("s_waitcnt lgkmcnt(0)")
    K(f"v_mov_b32 v{t1}, v{O+8}")
    K(f"v_mov_b32 v{t2}, v{O+8}")
    K(f"v_permlane32_swap_b32 v{t1}, v{t2}")
    K(f"v_rcp_f32 v{t1}, v{t1}")
    for i in range(8): K(f"v_mul_f32 v{O+i}, v{O+i}, v{t1}")
    for i in range(4): K(f"v_cvt_pk_bf16_f32 v{P+i}, v{O+2*i}, v{O+2*i+1}")
    K(f"v_lshlrev_b32 v{vt}, 10, v{l32}")
    K(f"v_lshl_add_u32 v{vt}, v{hh}, 3, v{vt}")
    K(f"s_lshl_b32 s{s_t}, s{s_qb}, 18")
    K(f"s_lshl_b32 s{s_t2}, s{s_w}, 15")
    K(f"s_add_u32 s{s_t}, s{s_t}, s{s_t2}")
    K(f"s_lshl_b32 s{s_t2}, s{s_h}, 5")
    K(f"s_add_u32 s{s_t}, s{s_t}, s{s_t2}")
    K(f"s_add_u32 s{s_t}, s{s_t}, {WS_O}")
    K(f"buffer_store_dwordx2 {vr(P,2)}, v{vt}, {sr(srdWS,4)}, s{s_t} offen")
    K(f"buffer_store_dwordx2 {vr(P+2,2)}, v{vt}, {sr(srdWS,4)}, s{s_t} offen offset:16")
    K("s_endpgm")
    for (L_rare, L_cont, Scur, Snext) in rare_blocks:
        K.label(L_rare); K.hist = []
        K("s_nop 15"); K("s_nop 15")
        fullmax()
        K(f"v_max_f32 v{mx}, 0, v{mx}")
        for i in range(16): K(f"v_sub_f32 v{Scur+i}, v{Scur+i}, v{mx}")
        for i in range(16): K(f"v_sub_f32 v{Snext+i}, v{Snext+i}, v{mx}")
        for i in range(16): K(f"v_sub_f32 v{Cm+i}, v{Cm+i}, v{mx}")
        K(f"v_sub_f32 v{t1}, 0, v{mx}")
        K(f"v_exp_f32 v{t1}, v{t1}")
        for i in range(9): K(f"v_mul_f32 v{O+i}, v{O+i}, v{t1}")
        K.flush()
        K(f"s_branch {L_cont}")
    attn_v = V.maxused + 1
    K.label(L_conv); K.hist = []
    V2 = RA(1, 128)
    for r in (lane, l32, hh, l16x): V2.used[r] = True
    V = V2
    srdSK = S.alloc(4, 4)
    srd(K, srdSK, pSK, 512*2048*2)
    s_d, s_cb = S.alloc(), S.alloc()
    K(f"s_sub_u32 s{s_d}, s{s_w}, 8")
    K(f"s_mul_i32 s{s_cb}, s{s_d}, {CONV_SZ}")
    K(f"s_add_u32 s{s_cb}, s{s_cb}, {LCONV}")
    K(f"s_lshl_b32 s{s_t}, s2, 1")
    K(f"s_add_u32 s{s_d}, s{s_d}, s{s_t}")
    s_D = S.alloc()
    K(f"s_lshl_b32 s{s_t}, s{s_d}, 1")
    K(f"s_and_b32 s{s_t}, s{s_t}, 0xfffffffc")
    K(f"s_load_dword s{s_D}, {sr(pSD,2)}, s{s_t}")
    K(f"s_lshl_b32 s{s_t2}, s{s_d}, 12")
    K(f"s_add_u32 s{s_t2}, s{s_t2}, {WS_KVT}")
    for i in range(4):
        K(f"s_add_u32 s{s_t}, s{s_t2}, {i*1024}")
        K(f"s_add_u32 m0, s{s_cb}, {CONV_U + i*1024}")
        K(f"buffer_load_dwordx4 v{l16x}, {sr(srdWS,4)}, s{s_t} offen lds")
    hr = V.alloc(16, 4); hx = V.alloc(); l64 = V.alloc()
    K(f"v_lshlrev_b32 v{l64}, 6, v{lane}")
    K(f"s_lshl_b32 s{s_t}, s{s_d}, 12")
    for i in range(4):
        K(f"buffer_load_dwordx4 {vr(hr+4*i,4)}, v{l64}, {sr(srdSK,4)}, s{s_t} offen offset:{16*i}")
    K(f"buffer_load_dword v{hx}, v{l64}, {sr(srdSK,4)}, s{s_t} offen offset:64")
    K("s_barrier")
    z4 = V.alloc(4, 4); va = V.alloc()
    for i in range(4): K(f"v_mov_b32 v{z4+i}, 0")
    K(f"v_add_u32 v{va}, s{s_cb}, v{l16x}")
    K(f"ds_write_b128 v{va}, {vr(z4,4)} offset:{CONV_U+4096}")
    K(f"ds_write_b128 v{va}, {vr(z4,4)} offset:{CONV_U+5120}")
    K("s_waitcnt vmcnt(0) lgkmcnt(0)")
    K(f"s_and_b32 s{s_t}, s{s_d}, 1")
    K(f"s_lshl_b32 s{s_t}, s{s_t}, 4")
    K(f"s_lshr_b32 s{s_D}, s{s_D}, s{s_t}")
    K(f"s_lshl_b32 s{s_D}, s{s_D}, 16")
    vh = V.alloc()
    K(f"v_add_u32 v{vh}, s{s_cb}, v{l64}")
    for i in range(4):
        K(f"ds_write_b128 v{vh}, {vr(hr+4*i,4)} offset:{CONV_H0 + 64 + 16*i}")
    h1 = V.alloc(16, 4)
    for j in range(16):
        nxt = hr + j + 1 if j < 15 else hx
        K(f"v_alignbit_b32 v{h1+j}, v{nxt}, v{hr+j}, 16")
    for i in range(4):
        K(f"ds_write_b128 v{vh}, {vr(h1+4*i,4)} offset:{CONV_H1 + 64 + 16*i}")
    K("s_mov_b64 exec, 1")
    K(f"v_lshlrev_b32 v{hx}, 16, v{hr}")
    vb = V.alloc()
    K(f"v_mov_b32 v{vb}, s{s_cb}")
    for i in range(4):
        K(f"ds_write_b128 v{vb}, {vr(z4,4)} offset:{CONV_H0 + 16*i}")
    for i in range(3):
        K(f"ds_write_b128 v{vb}, {vr(z4,4)} offset:{CONV_H1 + 16*i}")
    K(f"v_mov_b32 v{z4+3}, v{hx}")
    K(f"ds_write_b128 v{vb}, {vr(z4,4)} offset:{CONV_H1 + 48}")
    K("s_mov_b64 exec, -1")
    K("s_waitcnt lgkmcnt(0)")
    K("s_barrier")
    for x in (hr,): V.free(x, 16)
    V.free(h1, 16); V.free(hx); V.free(vh); V.free(vb)
    aad, bad, tq = V.alloc(), V.alloc(), V.alloc()
    K(f"v_lshlrev_b32 v{aad}, 1, v{l32}")
    K(f"v_lshlrev_b32 v{tq}, 4, v{hh}")
    K(f"v_sub_u32 v{aad}, v{aad}, v{tq}")
    K(f"v_and_b32 v{tq}, 1, v{l32}")
    K(f"v_cmp_eq_u32 vcc, 1, v{tq}")
    o_odd = CONV_H0 + (-16 - 7 + 32) * 2
    o_even = CONV_H1 + (-16 - 7 + 31) * 2
    K(f"v_mov_b32 v{tq}, {o_even}")
    K(f"v_mov_b32 v{bad}, {o_odd}")
    K(f"v_cndmask_b32 v{tq}, v{tq}, v{bad}, vcc")
    K(f"v_add_u32 v{aad}, v{aad}, v{tq}")
    K(f"v_add_u32 v{aad}, s{s_cb}, v{aad}")
    K(f"v_lshlrev_b32 v{bad}, 6, v{l32}")
    K(f"v_lshl_add_u32 v{bad}, v{hh}, 4, v{bad}")
    K(f"v_sub_u32 v{bad}, {CONV_U + 4080 - 2048 - 32}, v{bad}")
    K(f"v_add_u32 v{bad}, s{s_cb}, v{bad}")
    Y = [V.alloc(16, 4), V.alloc(16, 4)]
    for c in range(2):
        for i in range(16): K(f"v_mov_b32 v{Y[c]+i}, 0")
    fa = [[V.alloc(4, 4), V.alloc(4, 4)] for _ in range(2)]
    fb = [[[V.alloc(4, 4), V.alloc(4, 4)] for _ in range(2)] for _ in range(2)]
    def rd(u, buf, both):
        for q in range(2):
            o = 16*u + (8 if q == 0 else 0)
            K(f"ds_read2_b32 {vr(fa[buf][q],2)}, v{aad} offset0:{o} offset1:{o+1}")
            K(f"ds_read2_b32 {vr(fa[buf][q]+2,2)}, v{aad} offset0:{o+2} offset1:{o+3}")
        for c in ((0, 1) if both else (1,)):
            for q in range(2):
                K(f"ds_read_b128 {vr(fb[buf][c][q],4)}, v{bad} offset:{64*u + (32 if q == 0 else 0) + (2048 if c == 0 else 0)}")
    s_ci = S.alloc()
    def cloop(n_iter, both):
        nrd = 4 + (4 if both else 2)
        L = K.newlabel("cloop")
        K(f"s_mov_b32 s{s_ci}, 0")
        K.label(L)
        rd(0, 0, both)
        for u in range(8):
            buf = u & 1
            if u < 7:
                rd(u + 1, buf ^ 1, both)
                K(f"s_waitcnt lgkmcnt({nrd})")
            else:
                K("s_waitcnt lgkmcnt(0)")
            for c in ((0, 1) if both else (1,)):
                for q in range(2):
                    K(f"v_mfma_f32_32x32x16_bf16 {vr(Y[c],16)}, {vr(fa[buf][q],4)}, {vr(fb[buf][c][q],4)}, {vr(Y[c],16)}")
        K(f"v_add_u32 v{aad}, 512, v{aad}")
        K(f"v_add_u32 v{bad}, 512, v{bad}")
        K(f"s_add_u32 s{s_ci}, s{s_ci}, 1")
        K(f"s_cmp_lt_u32 s{s_ci}, {n_iter}")
        K(f"s_cbranch_scc1 {L}")
    cloop(4, True)
    cloop(4, False)
    K.flush()
    ua = V.alloc(); sa_ = V.alloc(); ur = V.alloc(2, 2); uf = [V.alloc() for _ in range(4)]; tt = V.alloc(); op = V.alloc(2, 2)
    K(f"v_lshlrev_b32 v{ua}, 6, v{l32}")
    K(f"v_lshl_add_u32 v{ua}, v{hh}, 3, v{ua}")
    K(f"v_sub_u32 v{ua}, {CONV_U + 4088 - 2048 - 48}, v{ua}")
    K(f"v_add_u32 v{ua}, s{s_cb}, v{ua}")
    K(f"v_lshlrev_b32 v{sa_}, 6, v{l32}")
    K(f"v_lshl_add_u32 v{sa_}, v{hh}, 3, v{sa_}")
    K(f"s_lshl_b32 s{s_t2}, s{s_d}, 12")
    K(f"s_add_u32 s{s_t2}, s{s_t2}, {WS_ZT}")
    for c in range(2):
        for g in range(4):
            y = Y[c] + 4*g
            K(f"ds_read_b64 {vr(ur,2)}, v{ua} offset:{(2048 if c == 0 else 0) + 16*(3-g)}")
            rnd2(K, y, y+1, tt); rnd2(K, y+2, y+3, tt)
            K("s_waitcnt lgkmcnt(0)")
            unpack(K, uf[3], ur, 0); unpack(K, uf[2], ur, 1); unpack(K, uf[1], ur+1, 0); unpack(K, uf[0], ur+1, 1)
            for i in range(4): K(f"v_mul_f32 v{uf[i]}, s{s_D}, v{uf[i]}")
            rnd2(K, uf[0], uf[1], tt); rnd2(K, uf[2], uf[3], tt)
            for i in range(4): K(f"v_add_f32 v{y+i}, v{y+i}, v{uf[i]}")
            K(f"v_cvt_pk_bf16_f32 v{op}, v{y}, v{y+1}")
            K(f"v_cvt_pk_bf16_f32 v{op+1}, v{y+2}, v{y+3}")
            K(f"s_add_u32 s{s_t}, s{s_t2}, {c*2048 + g*16}")
            K(f"buffer_store_dwordx2 {vr(op,2)}, v{sa_}, {sr(srdWS,4)}, s{s_t} offen")
    K.label(L_end); K.hist = []
    K("s_endpgm")
    return K, max(attn_v, V.maxused + 1), S.maxused + 1
```

```python
from asmlib import *
from common import *
from gemm import *
L3_LDS = 8 * 16384

def gen_l3():
    K = Kern("k3_outproj_mix_kernel")
    V = RA(1, 128); S = RA(3, 100)
    K.raw(".globl k3_outproj_mix_kernel\n.p2align 8\n.type k3_outproj_mix_kernel,@function\nk3_outproj_mix_kernel:")
    L_end = K.newlabel("end")
    K("s_cmp_ge_u32 s2, 256")
    K(f"s_cbranch_scc1 {L_end}")
    pWS, pWO, pX, pOUT = [S.alloc(2, 2) for _ in range(4)]
    for p, off in ((pWS, KA_WS), (pWO, KA_WO), (pX, KA_X), (pOUT, KA_OUT)):
        K(f"s_load_dwordx2 {sr(p,2)}, s[0:1], {off}")
    lane = V.alloc(); s_w = S.alloc()
    K(f"v_lshrrev_b32 v{lane}, 6, v0")
    K(f"v_readfirstlane_b32 s{s_w}, v{lane}")
    K(f"v_and_b32 v{lane}, 63, v0")
    K("s_waitcnt lgkmcnt(0)")
    srdWS, srdWO, srdX, srdOUT = [S.alloc(4, 4) for _ in range(4)]
    srd(K, srdWS, pWS, WS_END); srd(K, srdWO, pWO, 512*512*2); srd(K, srdX, pX, 2048*512*2); srd(K, srdOUT, pOUT, 2048*512*2)
    s_s0, s_n0, sA, sB, s_t = [S.alloc() for _ in range(5)]
    K(f"s_and_b32 s{s_s0}, s2, 31")
    K(f"s_lshl_b32 s{s_s0}, s{s_s0}, 6")
    K(f"s_lshr_b32 s{s_n0}, s2, 5")
    K(f"s_lshl_b32 s{s_n0}, s{s_n0}, 6")
    K(f"s_lshl_b32 s{sA}, s{s_s0}, 10")
    K(f"s_add_u32 s{sA}, s{sA}, {WS_O}")
    K(f"s_lshl_b32 s{sB}, s{s_n0}, 1")
    l32e, hhe = V.alloc(), V.alloc()
    K(f"v_and_b32 v{l32e}, 31, v{lane}")
    K(f"v_lshrrev_b32 v{hhe}, 5, v{lane}")
    s_wm2, s_wn2, s_rs, s_cn = [S.alloc() for _ in range(4)]
    K(f"s_lshr_b32 s{s_wm2}, s{s_w}, 1")
    K(f"s_and_b32 s{s_wn2}, s{s_w}, 1")
    K(f"s_lshl_b32 s{s_rs}, s{s_wm2}, 5")
    K(f"s_add_u32 s{s_rs}, s{s_rs}, s{s_s0}")
    K(f"s_lshl_b32 s{s_cn}, s{s_wn2}, 5")
    K(f"s_add_u32 s{s_cn}, s{s_cn}, s{s_n0}")
    vx, vz, vg = V.alloc(), V.alloc(), V.alloc()
    K(f"v_lshlrev_b32 v{vx}, 10, v{l32e}")
    K(f"v_lshl_add_u32 v{vx}, v{hhe}, 3, v{vx}")
    K(f"v_lshlrev_b32 v{vz}, 14, v{hhe}")
    K(f"v_lshl_add_u32 v{vz}, v{l32e}, 1, v{vz}")
    K(f"v_lshlrev_b32 v{vg}, 2, v{l32e}")
    xr = V.alloc(8, 2); zr = V.alloc(16); gr = V.alloc()
    s_xo, s_zo = S.alloc(), S.alloc()
    K(f"s_lshl_b32 s{s_xo}, s{s_rs}, 10")
    K(f"s_lshl_b32 s{s_t}, s{s_cn}, 1")
    K(f"s_add_u32 s{s_xo}, s{s_xo}, s{s_t}")
    K(f"s_lshl_b32 s{s_zo}, s{s_cn}, 12")
    K(f"s_lshl_b32 s{s_t}, s{s_rs}, 1")
    K(f"s_add_u32 s{s_zo}, s{s_zo}, s{s_t}")
    K(f"s_add_u32 s{s_zo}, s{s_zo}, {WS_ZT}")
    for g in range(4):
        K(f"buffer_load_dwordx2 {vr(xr+2*g,2)}, v{vx}, {sr(srdX,4)}, s{s_xo} offen offset:{16*g}")
    for g in range(4):
        for i in range(4):
            K(f"s_add_u32 s{s_t}, s{s_zo}, {(8*g+i)*4096}")
            K(f"buffer_load_ushort v{zr+4*g+i}, v{vz}, {sr(srdWS,4)}, s{s_t} offen")
    K(f"s_lshl_b32 s{s_t}, s{s_rs}, 2")
    K(f"s_add_u32 s{s_t}, s{s_t}, {WS_G}")
    K(f"buffer_load_dword v{gr}, v{vg}, {sr(srdWS,4)}, s{s_t} offen")
    c = GemmCfg()
    c.BM, c.BN, c.NS = 64, 64, 8
    c.srdA, c.srdB, c.strideB = srdWS, srdWO, 1024
    c.sA, c.sB, c.s_w, c.v_lane, c.form, c.lds_base = sA, sB, s_w, lane, 'ns', 0
    acc, s_wm, s_wn, l32, hh = gemm_core(K, V, S, c)
    a0 = acc[0][0]
    omg = V.alloc(); tt = V.alloc(); xf = [V.alloc() for _ in range(4)]; pk = V.alloc(2, 2)
    K(f"v_sub_f32 v{omg}, 1.0, v{gr}")
    K(f"v_cvt_pk_bf16_f32 v{tt}, v{omg}, v{omg}")
    K(f"v_lshlrev_b32 v{omg}, 16, v{tt}")
    for g in range(4):
        b = a0 + 4*g; z = zr + 4*g
        rnd2(K, b, b+1, tt); rnd2(K, b+2, b+3, tt)
        for i in range(4):
            unpack(K, xf[i], xr + 2*g + (i >> 1), i & 1)
            K(f"v_lshlrev_b32 v{z+i}, 16, v{z+i}")
            K(f"v_mul_f32 v{xf[i]}, v{xf[i]}, v{z+i}")
        rnd2(K, xf[0], xf[1], tt); rnd2(K, xf[2], xf[3], tt)
        for i in range(4):
            K(f"v_mul_f32 v{xf[i]}, v{gr}, v{xf[i]}")
            K(f"v_mul_f32 v{b+i}, v{omg}, v{b+i}")
        rnd2(K, xf[0], xf[1], tt); rnd2(K, xf[2], xf[3], tt)
        rnd2(K, b, b+1, tt); rnd2(K, b+2, b+3, tt)
        for i in range(4): K(f"v_add_f32 v{b+i}, v{b+i}, v{xf[i]}")
        K(f"v_cvt_pk_bf16_f32 v{pk}, v{b}, v{b+1}")
        K(f"v_cvt_pk_bf16_f32 v{pk+1}, v{b+2}, v{b+3}")
        K(f"buffer_store_dwordx2 {vr(pk,2)}, v{vx}, {sr(srdOUT,4)}, s{s_xo} offen offset:{16*g}")
    K.label(L_end); K.hist = []
    K("s_endpgm")
    return K, V.maxused + 1, S.maxused + 1
```

```python
import sys
sys.path.insert(0, "gen")
from asmlib import *
from common import *
import l1, l2
HEADER = open("gated_mix__ssm_conv_h3__softmax_full_mha__prompt.s.ref").read().split("; Override launch geometry")[0]
def build(parts):
    out = HEADER
    for K, nv, ns, grid, blk, lds in parts:
        out += f"; @launch kernel={K.name} grid=({grid},1,1) block=({blk},1,1) lds={lds}\n"
    out += '.amdgcn_target "amdgcn-amd-amdhsa--gfx950"\n.text\n'
    for K, nv, ns, grid, blk, lds in parts:
        out += K.text()
        out += descriptor(K.name, nv, max(ns, 16))
    return out
if __name__ == "__main__":
    parts = []
    which = sys.argv[2].split(",") if len(sys.argv) > 2 else ["l1", "l2", "l3"]
    if "l1" in which:
        K, nv, ns = l1.gen_l1(); print("l1 vgpr", nv, "sgpr", ns, "nops", K.nops_added, file=sys.stderr)
        parts.append((K, nv, ns, l1.N_GEMM_WG + l1.N_PREP_WG, 256, l1.L1_LDS))
    if "l2" in which:
        K, nv, ns = l2.gen_l2(); print("l2 vgpr", nv, "sgpr", ns, "nops", K.nops_added, file=sys.stderr)
        parts.append((K, nv, ns, 256, 640, l2.L2_LDS))
    if "l3" in which:
        import l3
        K, nv, ns = l3.gen_l3(); print("l3 vgpr", nv, "sgpr", ns, "nops", K.nops_added, file=sys.stderr)
        parts.append((K, nv, ns, 256, 256, l3.L3_LDS))
    open(sys.argv[1], "w").write(build(parts))
```

```python
from asmlib import *
from common import *

class GemmCfg:
    pass

def gemm_core(K, V, S, c):
    BM, BN, NS = c.BM, c.BN, c.NS
    WR, WC = getattr(c, "WR", 2), getattr(c, "WC", 2)
    NWV = WR * WC
    MT, NT = BM // WR // 32, BN // WC // 32
    RB = BN * 2
    ABYTES, BBYTES = BM * 128, 64 * RB
    SLOT = ABYTES + BBYTES
    nA = BM // 8 // NWV
    nB = RB // 16 // NWV
    per_stage = nA + nB
    NST = 8
    PRE = NS - 1 if NS < NST else NST
    lane = c.v_lane
    s_wm = S.alloc(); s_wn = S.alloc()
    K(f"s_lshr_b32 s{s_wm}, s{c.s_w}, {WC.bit_length()-1}")
    K(f"s_and_b32 s{s_wn}, s{c.s_w}, {WC-1}")
    voffA = [V.alloc(), V.alloc()]; voffB = V.alloc()
    t0 = V.alloc(); t1 = V.alloc()
    for par in range(2):
        K(f"v_lshrrev_b32 v{t0}, 4, v{lane}")
        if par: K(f"v_add_u32 v{t0}, 4, v{t0}")
        K(f"v_and_b32 v{t0}, 7, v{t0}")
        K(f"v_and_b32 v{t1}, 7, v{lane}")
        K(f"v_xor_b32 v{t0}, v{t0}, v{t1}")
        K(f"v_lshlrev_b32 v{t0}, 4, v{t0}")
        K(f"v_lshrrev_b32 v{t1}, 3, v{lane}")
        K(f"v_lshl_add_u32 v{voffA[par]}, v{t1}, 10, v{t0}")
    if RB == 256:
        K(f"v_lshrrev_b32 v{t0}, 4, v{lane}")
        K(f"v_lshlrev_b32 v{t1}, 2, v{t0}")
        K(f"v_and_b32 v{voffB}, 15, v{lane}")
        K(f"v_xor_b32 v{voffB}, v{voffB}, v{t1}")
        K(f"v_lshlrev_b32 v{voffB}, 4, v{voffB}")
    else:
        K(f"v_lshrrev_b32 v{t0}, 3, v{lane}")
        K(f"v_lshrrev_b32 v{t1}, 4, v{lane}")
        K(f"v_and_b32 v{t1}, 1, v{t1}")
        K(f"v_lshlrev_b32 v{t1}, 2, v{t1}")
        K(f"v_and_b32 v{voffB}, 7, v{lane}")
        K(f"v_xor_b32 v{voffB}, v{voffB}, v{t1}")
        K(f"v_lshlrev_b32 v{voffB}, 4, v{voffB}")
    s_str = S.alloc()
    K(f"s_mov_b32 s{s_str}, {c.strideB}")
    K(f"v_mul_lo_u32 v{t0}, v{t0}, s{s_str}")
    K(f"v_add_u32 v{voffB}, v{voffB}, v{t0}")
    sA_w = S.alloc(); sB_w = S.alloc(); s_wlds = S.alloc(); s_tmp = S.alloc()
    rowsB = 1024 // RB
    K(f"s_mul_i32 s{sA_w}, s{c.s_w}, {nA*8*1024}")
    K(f"s_add_u32 s{sA_w}, s{sA_w}, s{c.sA}")
    K(f"s_mul_i32 s{sB_w}, s{c.s_w}, {nB*rowsB*c.strideB}")
    K(f"s_add_u32 s{sB_w}, s{sB_w}, s{c.sB}")
    assert nA == nB
    K(f"s_lshl_b32 s{s_wlds}, s{c.s_w}, {10 + (nA.bit_length()-1)}")
    def issue_stage(t):
        slot = t % NS
        for j in range(nA):
            K(f"s_add_u32 s{s_tmp}, s{sA_w}, {j*8192 + t*128}")
            K(f"s_add_u32 m0, s{s_wlds}, {c.lds_base + slot*SLOT + j*1024}")
            K(f"buffer_load_dwordx4 v{voffA[j&1]}, {sr(c.srdA,4)}, s{s_tmp} offen lds")
        for j in range(nB):
            K(f"s_add_u32 s{s_tmp}, s{sB_w}, {(j*rowsB + t*64)*c.strideB}")
            K(f"s_add_u32 m0, s{s_wlds}, {c.lds_base + slot*SLOT + ABYTES + j*1024}")
            K(f"buffer_load_dwordx4 v{voffB}, {sr(c.srdB,4)}, s{s_tmp} offen lds")
    aoff = [V.alloc() for _ in range(4)]
    boff = [V.alloc() for _ in range(NT)]
    l32 = V.alloc(); hh = V.alloc()
    K(f"v_and_b32 v{l32}, 31, v{lane}")
    K(f"v_lshrrev_b32 v{hh}, 5, v{lane}")
    K(f"v_lshrrev_b32 v{t0}, 1, v{lane}")
    K(f"v_and_b32 v{t0}, 7, v{t0}")
    K(f"s_mul_i32 s{s_tmp}, s{s_wm}, {(BM//WR)*128}")
    K(f"s_add_u32 s{s_tmp}, s{s_tmp}, {c.lds_base}")
    for ks in range(4):
        K(f"v_add_u32 v{t1}, {2*ks}, v{hh}")
        K(f"v_xor_b32 v{t1}, v{t1}, v{t0}")
        K(f"v_lshlrev_b32 v{t1}, 4, v{t1}")
        K(f"v_lshl_add_u32 v{aoff[ks]}, v{l32}, 7, v{t1}")
        K(f"v_add_u32 v{aoff[ks]}, s{s_tmp}, v{aoff[ks]}")
    g = V.alloc(); r_ = V.alloc(); cp = V.alloc(); low = V.alloc()
    K(f"v_lshrrev_b32 v{g}, 4, v{lane}")
    K(f"v_and_b32 v{cp}, 15, v{lane}")
    K(f"v_lshrrev_b32 v{r_}, 2, v{cp}")
    K(f"v_and_b32 v{cp}, 3, v{cp}")
    K(f"v_and_b32 v{low}, 1, v{g}")
    K(f"v_lshlrev_b32 v{low}, 1, v{low}")
    K(f"v_lshrrev_b32 v{t0}, 1, v{cp}")
    K(f"v_add_u32 v{low}, v{low}, v{t0}")
    for cb in range(NT):
        if RB == 256:
            K(f"s_mul_i32 s{s_tmp}, s{s_wn}, {NT}")
            K(f"s_add_u32 s{s_tmp}, s{s_tmp}, {cb}")
            K(f"v_xor_b32 v{t0}, s{s_tmp}, v{r_}")
        else:
            K(f"v_lshrrev_b32 v{t0}, 1, v{r_}")
            K(f"v_xor_b32 v{t0}, s{s_wn}, v{t0}")
        K(f"v_lshl_add_u32 v{t0}, v{t0}, 2, v{low}")
        K(f"v_lshlrev_b32 v{t0}, 4, v{t0}")
        K(f"v_and_b32 v{t1}, 1, v{cp}")
        K(f"v_lshl_add_u32 v{t0}, v{t1}, 3, v{t0}")
        K(f"v_lshrrev_b32 v{t1}, 1, v{g}")
        K(f"v_lshl_add_u32 v{t1}, v{t1}, 3, v{r_}")
        K(f"v_mul_u32_u24 v{t1}, {RB}, v{t1}")
        K(f"v_add_u32 v{boff[cb]}, v{t0}, v{t1}")
        K(f"v_add_u32 v{boff[cb]}, {c.lds_base + ABYTES}, v{boff[cb]}")
    for x in (g, r_, cp, low, t0, t1): V.free(x)
    acc = [[V.alloc(16, 4) for _ in range(NT)] for _ in range(MT)]
    for rb in range(MT):
        for cb in range(NT):
            for i in range(16): K(f"v_mov_b32 v{acc[rb][cb]+i}, 0")
    fA = [[V.alloc(4, 4) for _ in range(MT)] for _ in range(2)]
    fB = [[V.alloc(4, 4) for _ in range(NT)] for _ in range(2)]
    for t in range(PRE): issue_stage(t)
    cur_slot_off = 0
    for t in range(NST):
        issued = min(NST, t + PRE)
        K(f"s_waitcnt vmcnt({(issued - t - 1) * per_stage})")
        K("s_barrier")
        if t + PRE < NST and NS < NST: issue_stage(t + PRE)
        want = (t % NS) * SLOT
        if want != cur_slot_off:
            d = want - cur_slot_off
            for a in aoff + boff:
                K(f"v_add_u32 v{a}, {d & 0xffffffff}, v{a}")
            cur_slot_off = want
        def read_frags(ks, buf):
            for rb in range(MT):
                K(f"ds_read_b128 {vr(fA[buf][rb],4)}, v{aoff[ks]} offset:{rb*4096}")
            for cb in range(NT):
                for tt in range(2):
                    K(f"ds_read_b64_tr_b16 {vr(fB[buf][cb]+2*tt,2)}, v{boff[cb]} offset:{(16*ks + 4*tt)*RB}")
        nrd = MT + 2 * NT
        read_frags(0, 0)
        for ks in range(4):
            buf = ks & 1
            if ks < 3:
                read_frags(ks + 1, buf ^ 1)
                K(f"s_waitcnt lgkmcnt({nrd})")
            else:
                K("s_waitcnt lgkmcnt(0)")
            for rb in range(MT):
                for cb in range(NT):
                    a, b = vr(fA[buf][rb], 4), vr(fB[buf][cb], 4)
                    if c.form == 'sn': K(f"v_mfma_f32_32x32x16_bf16 {vr(acc[rb][cb],16)}, {a}, {b}, {vr(acc[rb][cb],16)}")
                    else:              K(f"v_mfma_f32_32x32x16_bf16 {vr(acc[rb][cb],16)}, {b}, {a}, {vr(acc[rb][cb],16)}")
    for x in aoff + boff + voffA + [voffB]: V.free(x)
    for bb in fA + fB:
        for x in bb: V.free(x, 4)
    return acc, s_wm, s_wn, l32, hh
```

```python
from asmlib import *
from common import *
from gemm import *

N_GEMM_WG = 192
N_PREP_WG = 64
L1_NS = 5
L1_LDS = L1_NS * 32768
L1_BLOCK = 512

def gen_l1(opts=()):
    K = Kern("k1_qkv_prep_kernel")
    V = RA(1, 128); S = RA(3, 100)
    K.raw(".globl k1_qkv_prep_kernel\n.p2align 8\n.type k1_qkv_prep_kernel,@function\nk1_qkv_prep_kernel:")
    L_prep, L_end = K.newlabel("prep"), K.newlabel("end")
    pX, pW, pWS, pK, pV, pSH, pGW = [S.alloc(2, 2) for _ in range(7)]
    for p, off in ((pX, KA_X), (pW, KA_WQKV), (pWS, KA_WS), (pK, KA_K), (pV, KA_V), (pSH, KA_SH), (pGW, KA_GW)):
        K(f"s_load_dwordx2 {sr(p,2)}, s[0:1], {off}")
    lane = V.alloc(); s_w = S.alloc()
    K(f"v_lshrrev_b32 v{lane}, 6, v0")
    K(f"v_readfirstlane_b32 s{s_w}, v{lane}")
    K(f"v_and_b32 v{lane}, 63, v0")
    K("s_waitcnt lgkmcnt(0)")
    srdX, srdW, srdWS = S.alloc(4, 4), S.alloc(4, 4), S.alloc(4, 4)
    srd(K, srdX, pX, 2048*512*2)
    srd(K, srdWS, pWS, WS_END)
    K(f"s_cmp_ge_u32 s2, {N_GEMM_WG}")
    K(f"s_cbranch_scc1 {L_prep}")
    if "nogemm" in opts: K("s_endpgm")
    srd(K, srdW, pW, 512*1536*2)
    s_mt, s_nt, s_s0, s_n0 = S.alloc(), S.alloc(), S.alloc(), S.alloc()
    K(f"s_and_b32 s{s_mt}, s2, 15")
    K(f"s_lshr_b32 s{s_nt}, s2, 4")
    K(f"s_lshl_b32 s{s_s0}, s{s_mt}, 7")
    K(f"s_lshl_b32 s{s_n0}, s{s_nt}, 7")
    sA, sB = S.alloc(), S.alloc()
    K(f"s_lshl_b32 s{sA}, s{s_s0}, 10")
    K(f"s_lshl_b32 s{sB}, s{s_n0}, 1")
    L_vtype = K.newlabel("vtype")
    K(f"s_cmp_ge_u32 s{s_nt}, 8")
    K(f"s_cbranch_scc1 {L_vtype}")
    def run(form):
        c = GemmCfg()
        c.BM, c.BN, c.NS, c.WR, c.WC = 128, 128, L1_NS, 4, 2
        c.srdA, c.srdB, c.strideB = srdX, srdW, 3072
        c.sA, c.sB, c.s_w, c.v_lane, c.form, c.lds_base = sA, sB, s_w, lane, form, 0
        Vs = V.used[:]; Ss = S.used[:]
        acc, s_wm, s_wn, l32, hh = gemm_core(K, V, S, c)
        st = V.alloc(); sE = S.alloc(); s_t = S.alloc(); s_t2 = S.alloc()
        pk = V.alloc(2, 2)
        if form == 'ns':
            K(f"v_lshlrev_b32 v{st}, 5, v{l32}")
            K(f"v_lshl_add_u32 v{st}, v{hh}, 3, v{st}")
            K(f"s_lshr_b32 s{s_t}, s{s_nt}, 2")
            K(f"s_lshl_b32 s{sE}, s{s_t}, 21")
            K(f"s_and_b32 s{s_t}, s{s_n0}, 511")
            K(f"s_lshl_b32 s{s_t}, s{s_t}, 12")
            K(f"s_add_u32 s{sE}, s{sE}, s{s_t}")
            K(f"s_lshl_b32 s{s_t}, s{s_wm}, 5")
            K(f"s_add_u32 s{s_t}, s{s_t}, s{s_s0}")
            K(f"s_lshl_b32 s{s_t}, s{s_t}, 5")
            K(f"s_add_u32 s{sE}, s{sE}, s{s_t}")
            K(f"s_lshl_b32 s{s_t}, s{s_wn}, 18")
            K(f"s_add_u32 s{sE}, s{sE}, s{s_t}")
            for cb in range(2):
                for rb in range(1):
                    for g in range(4):
                        a = acc[rb][cb] + 4*g
                        K(f"v_cvt_pk_bf16_f32 v{pk}, v{a}, v{a+1}")
                        K(f"v_cvt_pk_bf16_f32 v{pk+1}, v{a+2}, v{a+3}")
                        K(f"s_add_u32 s{s_t2}, s{sE}, {(cb*2 + (g>>1))*65536}")
                        K(f"buffer_store_dwordx2 {vr(pk,2)}, v{st}, {sr(srdWS,4)}, s{s_t2} offen offset:{rb*1024 + (g&1)*16}")
        else:
            t0 = V.alloc()
            K(f"v_lshlrev_b32 v{st}, 12, v{l32}")
            K(f"v_lshl_add_u32 v{st}, v{hh}, 4, v{st}")
            V.free(t0)
            K(f"s_and_b32 s{s_t}, s{s_n0}, 511")
            K(f"s_lshl_b32 s{sE}, s{s_t}, 12")
            K(f"s_add_u32 s{sE}, s{sE}, {WS_VT}")
            K(f"s_lshl_b32 s{s_t}, s{s_wm}, 5")
            K(f"s_add_u32 s{s_t}, s{s_t}, s{s_s0}")
            K(f"s_lshl_b32 s{s_t}, s{s_t}, 1")
            K(f"s_add_u32 s{sE}, s{sE}, s{s_t}")
            K(f"s_lshl_b32 s{s_t}, s{s_wn}, 18")
            K(f"s_add_u32 s{sE}, s{sE}, s{s_t}")
            for cb in range(2):
                for rb in range(1):
                    for g in range(4):
                        a = acc[rb][cb] + 4*g
                        K(f"v_cvt_pk_bf16_f32 v{pk}, v{a}, v{a+1}")
                        K(f"v_cvt_pk_bf16_f32 v{pk+1}, v{a+2}, v{a+3}")
                        K(f"s_add_u32 s{s_t2}, s{sE}, {cb*2*65536}")
                        K(f"buffer_store_dwordx2 {vr(pk,2)}, v{st}, {sr(srdWS,4)}, s{s_t2} offen offset:{rb*64 + (g>>1)*32 + (g&1)*8}")
        K("s_endpgm")
        V.used = Vs; S.used = Ss
    run('ns')
    K.label(L_vtype); K.hist = []
    run('sn')
    K.label(L_prep); K.hist = []
    if "noprep" in opts: K("s_endpgm")
    K(f"s_cmp_ge_u32 s2, {N_GEMM_WG + N_PREP_WG}")
    K(f"s_cbranch_scc1 {L_end}")
    srdK, srdV, srdSH, srdGW = S.alloc(4,4), S.alloc(4,4), S.alloc(4,4), S.alloc(4,4)
    srd(K, srdK, pK, 2048*512*2); srd(K, srdV, pV, 2048*512*2); srd(K, srdSH, pSH, 512*4*2); srd(K, srdGW, pGW, 512*2)
    s_r0 = S.alloc(); s_t = S.alloc()
    K(f"s_sub_u32 s{s_r0}, s2, {N_GEMM_WG}")
    K(f"s_lshl_b32 s{s_r0}, s{s_r0}, 5")
    K(f"s_lshl_b32 s{s_t}, s{s_w}, 2")
    K(f"s_add_u32 s{s_r0}, s{s_r0}, s{s_t}")
    l16 = V.alloc()
    K(f"v_lshlrev_b32 v{l16}, 4, v{lane}")
    kraw = [V.alloc(4,4) for _ in range(7)]; vraw = [V.alloc(4,4) for _ in range(4)]; xraw = [V.alloc(4,4) for _ in range(4)]
    shraw = V.alloc(16, 4); gwraw = V.alloc(4, 4)
    l64 = V.alloc()
    K(f"v_lshlrev_b32 v{l64}, 6, v{lane}")
    for i in range(4):
        K(f"buffer_load_dwordx4 {vr(shraw+4*i,4)}, v{l64}, {sr(srdSH,4)}, 0 offen offset:{16*i}")
    K(f"buffer_load_dwordx4 {vr(gwraw,4)}, v{l16}, {sr(srdGW,4)}, 0 offen")
    s_ro = S.alloc()
    K(f"s_lshl_b32 s{s_ro}, s{s_r0}, 10")
    for i in range(3):
        for j in range(4): K(f"v_mov_b32 v{kraw[i]+j}, 0")
    L_skip = K.newlabel("skiphalo")
    K(f"s_cmp_eq_u32 s{s_r0}, 0")
    K(f"s_cbranch_scc1 {L_skip}")
    K(f"s_sub_u32 s{s_t}, s{s_ro}, 3072")
    for i in range(3):
        K(f"buffer_load_dwordx4 {vr(kraw[i],4)}, v{l16}, {sr(srdK,4)}, s{s_t} offen offset:{i*1024}")
    K.label(L_skip); K.hist = []
    for i in range(4):
        K(f"buffer_load_dwordx4 {vr(kraw[3+i],4)}, v{l16}, {sr(srdK,4)}, s{s_ro} offen offset:{i*1024}")
        K(f"buffer_load_dwordx4 {vr(vraw[i],4)}, v{l16}, {sr(srdV,4)}, s{s_ro} offen offset:{i*1024}")
        K(f"buffer_load_dwordx4 {vr(xraw[i],4)}, v{l16}, {sr(srdX,4)}, s{s_ro} offen offset:{i*1024}")
    vkvt = V.alloc()
    K(f"v_lshlrev_b32 v{vkvt}, 15, v{lane}")
    s_kvt = S.alloc()
    K(f"s_lshl_b32 s{s_t}, s{s_r0}, 1")
    K(f"s_sub_u32 s{s_kvt}, {WS_KVT + 2044*2}, s{s_t}")
    K("s_waitcnt vmcnt(0)")
    kf = [V.alloc() for _ in range(7)]; vf = [V.alloc() for _ in range(4)]; wv = [V.alloc() for _ in range(4)]
    accv = [V.alloc() for _ in range(4)]; tmp = [V.alloc() for _ in range(4)]; tt = V.alloc()
    gs = [V.alloc() for _ in range(4)]; xf = [V.alloc() for _ in range(4)]; gwf = V.alloc()
    outp = V.alloc(2, 2)
    for r in range(4): K(f"v_mov_b32 v{gs[r]}, 0")
    for e in range(8):
        dw, hf = e >> 1, e & 1
        for i in range(7): unpack(K, kf[i], kraw[i] + dw, hf)
        for r in range(4): unpack(K, vf[r], vraw[r] + dw, hf)
        unpack(K, wv[0], shraw + 2*e, 0); unpack(K, wv[1], shraw + 2*e, 1)
        unpack(K, wv[2], shraw + 2*e + 1, 0); unpack(K, wv[3], shraw + 2*e + 1, 1)
        for r in range(4): K(f"v_mul_f32 v{accv[r]}, v{kf[r]}, v{wv[3]}")
        rnd2(K, accv[0], accv[1], tt); rnd2(K, accv[2], accv[3], tt)
        for tap in (2, 1, 0):
            for r in range(4): K(f"v_mul_f32 v{tmp[r]}, v{kf[r + 3 - tap]}, v{wv[tap]}")
            rnd2(K, tmp[0], tmp[1], tt); rnd2(K, tmp[2], tmp[3], tt)
            for r in range(4): K(f"v_add_f32 v{accv[r]}, v{accv[r]}, v{tmp[r]}")
            rnd2(K, accv[0], accv[1], tt); rnd2(K, accv[2], accv[3], tt)
        for r in range(4): K(f"v_mul_f32 v{accv[r]}, v{accv[r]}, v{vf[r]}")
        K(f"v_cvt_pk_bf16_f32 v{outp}, v{accv[3]}, v{accv[2]}")
        K(f"v_cvt_pk_bf16_f32 v{outp+1}, v{accv[1]}, v{accv[0]}")
        K(f"s_add_u32 s{s_t}, s{s_kvt}, {e*4096}")
        K(f"buffer_store_dwordx2 {vr(outp,2)}, v{vkvt}, {sr(srdWS,4)}, s{s_t} offen")
        unpack(K, gwf, gwraw + dw, hf)
        for r in range(4):
            unpack(K, xf[r], xraw[r] + dw, hf)
            K(f"v_mul_f32 v{xf[r]}, v{xf[r]}, v{gwf}")
        rnd2(K, xf[0], xf[1], tt); rnd2(K, xf[2], xf[3], tt)
        for r in range(4): K(f"v_add_f32 v{gs[r]}, v{gs[r]}, v{xf[r]}")
    for off in (0x041F, 0x081F, 0x101F, 0x201F, 0x401F):
        for r in range(4): K(f"ds_swizzle_b32 v{tmp[r]}, v{gs[r]} offset:{off}")
        K("s_waitcnt lgkmcnt(0)")
        for r in range(4): K(f"v_add_f32 v{gs[r]}, v{gs[r]}, v{tmp[r]}")
    s_h = [S.alloc() for _ in range(4)]
    for r in range(4): K(f"v_readlane_b32 s{s_h[r]}, v{gs[r]}, 32")
    for r in range(4): K(f"v_add_f32 v{gs[r]}, s{s_h[r]}, v{gs[r]}")
    rnd2(K, gs[0], gs[1], tt); rnd2(K, gs[2], gs[3], tt)
    for r in range(4):
        K(f"v_mul_f32 v{gs[r]}, {hex(f32bits(-LOG2E))}, v{gs[r]}")
        K(f"v_exp_f32 v{gs[r]}, v{gs[r]}")
    for r in range(4):
        K(f"v_add_f32 v{gs[r]}, 1.0, v{gs[r]}")
        K(f"v_rcp_f32 v{gs[r]}, v{gs[r]}")
    rnd2(K, gs[0], gs[1], tt); rnd2(K, gs[2], gs[3], tt)
    gq = V.alloc(4, 4)
    for r in range(4): K(f"v_mov_b32 v{gq+r}, v{gs[r]}")
    vz = V.alloc()
    K(f"v_mov_b32 v{vz}, 0")
    K(f"s_lshl_b32 s{s_t}, s{s_r0}, 2")
    K(f"s_add_u32 s{s_t}, s{s_t}, {WS_G}")
    K("s_mov_b64 exec, 1")
    K(f"buffer_store_dwordx4 {vr(gq,4)}, v{vz}, {sr(srdWS,4)}, s{s_t} offen")
    K.label(L_end); K.hist = []
    K("s_endpgm")
    return K, V.maxused + 1, S.maxused + 1

import struct
def f32bits(x): return struct.unpack("<I", struct.pack("<f", x))[0]
```

```python
from asmlib import *
from common import *
import struct
def f32bits(x): return struct.unpack("<I", struct.pack("<f", x))[0]

LK = 0
LV = 65536
VROW = 4112
LCONV = LV + 16 * VROW
CONV_U, CONV_H0, CONV_H1, CONV_SZ = 0, 6144, 6144 + 4224, 6144 + 2 * 4224
LCONST = LCONV + 2 * CONV_SZ
L2_LDS = LCONST + 512
TAU = 10.0
QSCALE = 0.25 * LOG2E

def gen_l2(opts=()):
    K = Kern("k2_attn_conv_kernel")
    V = RA(1, 128); S = RA(3, 100)
    K.raw(".globl k2_attn_conv_kernel\n.p2align 8\n.type k2_attn_conv_kernel,@function\nk2_attn_conv_kernel:")
    L_conv, L_end = K.newlabel("conv"), K.newlabel("end")
    K("s_cmp_ge_u32 s2, 256")
    K(f"s_cbranch_scc1 {L_end}")
    pWS, pSK, pSD = S.alloc(2,2), S.alloc(2,2), S.alloc(2,2)
    K(f"s_load_dwordx2 {sr(pWS,2)}, s[0:1], {KA_WS}")
    K(f"s_load_dwordx2 {sr(pSK,2)}, s[0:1], {KA_SSMK}")
    K(f"s_load_dwordx2 {sr(pSD,2)}, s[0:1], {KA_SSMD}")
    lane = V.alloc(); s_w = S.alloc()
    K(f"v_lshrrev_b32 v{lane}, 6, v0")
    K(f"v_readfirstlane_b32 s{s_w}, v{lane}")
    K(f"v_and_b32 v{lane}, 63, v0")
    l32 = V.alloc(); hh = V.alloc(); l16x = V.alloc()
    K(f"v_and_b32 v{l32}, 31, v{lane}")
    K(f"v_lshrrev_b32 v{hh}, 5, v{lane}")
    K(f"v_lshlrev_b32 v{l16x}, 4, v{lane}")
    K("s_waitcnt lgkmcnt(0)")
    srdWS = S.alloc(4, 4)
    srd(K, srdWS, pWS, WS_END)
    stamps = "stamps" in opts
    if stamps:
        pDBG = S.alloc(2, 2); srdDBG = S.alloc(4, 4); s_ts = S.alloc(2, 2); v_ts = V.alloc(); v_z = V.alloc()
        srd(K, srdDBG, pWS, 0xE00000)
    def stamp(i):
        if not stamps: return
        K(f"s_memrealtime {sr(s_ts,2)}")
        K("s_waitcnt lgkmcnt(0)")
        K(f"v_mov_b32 v{v_ts}, s{s_ts}")
        K(f"v_mov_b32 v{v_z}, 0")
        K(f"s_mul_i32 s{s_ts+1}, s{s_w}, 16")
        K(f"s_mul_i32 s{s_ts}, s2, 256")
        K(f"s_add_u32 s{s_ts+1}, s{s_ts+1}, s{s_ts}")
        K(f"s_add_u32 s{s_ts+1}, s{s_ts+1}, 0xD00000")
        K("s_mov_b64 exec, 1")
        K(f"buffer_store_dword v{v_ts}, v{v_z}, {sr(srdDBG,4)}, s{s_ts+1} offen offset:{4*i}")
        K("s_mov_b64 exec, -1")
    stamp(0)
    if "dup16" in opts:
        K(f"s_and_b32 s{s_w}, s{s_w}, 7")
    K(f"s_cmp_ge_u32 s{s_w}, 8")
    K(f"s_cbranch_scc1 {L_conv}")
    s_h, s_qb, s_t, s_t2 = S.alloc(), S.alloc(), S.alloc(), S.alloc()
    K(f"s_and_b32 s{s_h}, s2, 31")
    K(f"s_lshr_b32 s{s_qb}, s2, 5")
    Qf = V.alloc(4, 4); vt = V.alloc()
    K(f"v_lshlrev_b32 v{vt}, 5, v{l32}")
    K(f"v_lshl_add_u32 v{vt}, v{hh}, 4, v{vt}")
    K(f"s_lshl_b32 s{s_t}, s{s_h}, 16")
    K(f"s_lshl_b32 s{s_t2}, s{s_qb}, 13")
    K(f"s_add_u32 s{s_t}, s{s_t}, s{s_t2}")
    K(f"s_lshl_b32 s{s_t2}, s{s_w}, 10")
    K(f"s_add_u32 s{s_t}, s{s_t}, s{s_t2}")
    K(f"s_add_u32 s{s_t}, s{s_t}, {WS_Q}")
    K(f"buffer_load_dwordx4 {vr(Qf,4)}, v{vt}, {sr(srdWS,4)}, s{s_t} offen")
    s_kb, s_vb, s_wl = S.alloc(), S.alloc(), S.alloc()
    K(f"s_lshl_b32 s{s_kb}, s{s_h}, 16")
    K(f"s_add_u32 s{s_kb}, s{s_kb}, {WS_K}")
    K(f"s_lshl_b32 s{s_t}, s{s_w}, 11")
    K(f"s_add_u32 s{s_kb}, s{s_kb}, s{s_t}")
    K(f"s_lshl_b32 s{s_vb}, s{s_h}, 16")
    K(f"s_add_u32 s{s_vb}, s{s_vb}, {WS_VT}")
    K(f"s_lshl_b32 s{s_t}, s{s_w}, 13")
    K(f"s_add_u32 s{s_vb}, s{s_vb}, s{s_t}")
    K(f"s_lshl_b32 s{s_wl}, s{s_w}, 11")
    s_wv = S.alloc()
    K(f"s_mul_i32 s{s_wv}, s{s_w}, {2*VROW}")
    for c in range(4):
        for i in range(2):
            K(f"s_add_u32 s{s_t}, s{s_kb}, {c*16384 + i*1024}")
            K(f"s_add_u32 m0, s{s_wl}, {LK + c*16384 + i*1024}")
            K(f"buffer_load_dwordx4 v{l16x}, {sr(srdWS,4)}, s{s_t} offen lds")
        for i in range(2):
            K(f"s_add_u32 s{s_t}, s{s_vb}, {i*4096 + c*1024}")
            K(f"s_add_u32 m0, s{s_wv}, {LV + i*VROW + c*1024}")
            K(f"buffer_load_dwordx4 v{l16x}, {sr(srdWS,4)}, s{s_t} offen lds")
    Cm = V.alloc(16, 4); O = V.alloc(16, 4); Sa = V.alloc(16, 4); Sb = V.alloc(16, 4)
    Kf = [V.alloc(4, 4), V.alloc(4, 4)]
    Vf = [[V.alloc(4, 4), V.alloc(4, 4)], [V.alloc(4, 4), V.alloc(4, 4)]]
    P = V.alloc(8, 4)
    kaddr, vaddr, mx, t1 = V.alloc(), V.alloc(), V.alloc(), V.alloc(2, 2)
    t2 = t1 + 1
    for i in range(16): K(f"v_mov_b32 v{O+i}, 0")
    K(f"v_cmp_eq_u32 vcc, 16, v{l32}")
    K(f"v_mov_b32 v{t1}, 0x3f803f80")
    K(f"v_cndmask_b32 v{t2}, 0, v{t1}, vcc")
    for b in range(2):
        for j in range(2):
            for i in range(4): K(f"v_mov_b32 v{Vf[b][j]+i}, v{t2}")
    K(f"v_lshlrev_b32 v{kaddr}, 5, v{l32}")
    K(f"v_lshl_add_u32 v{kaddr}, v{hh}, 4, v{kaddr}")
    s_vr = S.alloc()
    K(f"s_mov_b32 s{s_vr}, {VROW}")
    K(f"v_mul_lo_u32 v{vaddr}, v{l32}, s{s_vr}")
    K(f"v_lshl_add_u32 v{vaddr}, v{hh}, 4, v{vaddr}")
    K(f"v_add_u32 v{vaddr}, {LV}, v{vaddr}")
    vinc = V.alloc()
    K(f"v_cmp_lt_u32 vcc, 15, v{l32}")
    K(f"v_lshlrev_b32 v{t1}, 4, v{hh}")
    K(f"v_add_u32 v{t1}, {LCONST + 256}, v{t1}")
    K(f"v_cndmask_b32 v{vaddr}, v{vaddr}, v{t1}, vcc")
    K(f"v_mov_b32 v{t1}, 128")
    K(f"v_cndmask_b32 v{vinc}, v{t1}, 0, vcc")
    K(f"v_cmp_eq_u32 vcc, 16, v{l32}")
    K(f"v_lshlrev_b32 v{t1}, 4, v{hh}")
    K(f"v_add_u32 v{t1}, {LCONST}, v{t1}")
    K(f"v_cndmask_b32 v{vaddr}, v{vaddr}, v{t1}, vcc")
    K(f"v_cmp_gt_u32 vcc, 32, v{lane}")
    K(f"v_mov_b32 v{t1}, 0x3f803f80")
    K(f"v_cndmask_b32 v{t1}, 0, v{t1}, vcc")
    K(f"v_mov_b32 v{t2}, v{t1}")
    K(f"v_lshlrev_b32 v{vt}, 3, v{lane}")
    K(f"v_add_u32 v{vt}, {LCONST}, v{vt}")
    K(f"ds_write_b64 v{vt}, {vr(t1,2)}")
    s_vm = S.alloc(2, 2)
    K(f"s_mov_b32 s{s_vm}, 0x0000ffff")
    K(f"s_mov_b32 s{s_vm+1}, 0x0000ffff")
    K("s_waitcnt vmcnt(16)")
    qa = [V.alloc() for _ in range(2)]
    for i in range(4):
        unpack(K, qa[0], Qf + i, 0); unpack(K, qa[1], Qf + i, 1)
        K(f"v_mul_f32 v{qa[0]}, {hex(f32bits(QSCALE))}, v{qa[0]}")
        K(f"v_mul_f32 v{qa[1]}, {hex(f32bits(QSCALE))}, v{qa[1]}")
        K(f"v_cvt_pk_bf16_f32 v{Qf+i}, v{qa[0]}, v{qa[1]}")
    for x in qa: V.free(x)
    K("s_waitcnt vmcnt(12) lgkmcnt(0)")
    K("s_barrier")
    stamp(1)
    K(f"ds_read_b128 {vr(Kf[0],4)}, v{kaddr}")
    for i in range(16): K(f"v_mov_b32 v{Cm+i}, 0")
    K("s_waitcnt lgkmcnt(0)")
    K(f"v_mfma_f32_32x32x16_bf16 {vr(Sa,16)}, {vr(Kf[0],4)}, {vr(Qf,4)}, {vr(Cm,16)}")
    def maxchain(Sx):
        K(f"v_max3_f32 v{mx}, v{Sx}, v{Sx+1}, v{Sx+2}")
        for i in range(3, 15, 2): K(f"v_max3_f32 v{mx}, v{mx}, v{Sx+i}, v{Sx+i+1}")
        K(f"v_max_f32 v{mx}, v{mx}, v{Sx+15}")
    def fullmax():
        K(f"v_mov_b32 v{t1}, v{mx}")
        K(f"v_mov_b32 v{t2}, v{mx}")
        K(f"v_permlane32_swap_b32 v{t1}, v{t2}")
        K(f"v_max_f32 v{mx}, v{t1}, v{t2}")
    maxchain(Sa); fullmax()
    for i in range(16): K(f"v_sub_f32 v{Cm+i}, 0, v{mx}")
    K(f"v_mfma_f32_32x32x16_bf16 {vr(Sa,16)}, {vr(Kf[0],4)}, {vr(Qf,4)}, {vr(Cm,16)}")
    K(f"ds_read_b128 {vr(Kf[1],4)}, v{kaddr} offset:1024")
    K(f"ds_read_b128 {vr(Vf[0][0],4)}, v{vaddr}")
    K(f"ds_read_b128 {vr(Vf[0][1],4)}, v{vaddr} offset:32")
    maxchain(Sa)
    K(f"v_cmp_lt_f32 vcc, {hex(f32bits(TAU))}, v{mx}")
    s_it = S.alloc()
    rare_blocks = []
    def half(Scur, Snext, Kn, Kp, Vc, Vn, koff, voff):
        L_rare, L_cont = K.newlabel("rare"), K.newlabel("cont")
        EXP = "v_mov_b32" if "noexp" in opts else "v_exp_f32"
        K(f"s_cbranch_vccnz {L_rare}")
        K.label(L_cont)
        for i in range(4): K(f"{EXP} v{Scur+i}, v{Scur+i}")
        K("s_waitcnt lgkmcnt(2)")
        K(f"v_mfma_f32_32x32x16_bf16 {vr(Snext,16)}, {vr(Kn,4)}, {vr(Qf,4)}, {vr(Cm,16)}")
        for i in range(4, 8): K(f"{EXP} v{Scur+i}, v{Scur+i}")
        for i in range(4): K(f"v_cvt_pk_bf16_f32 v{P+i}, v{Scur+2*i}, v{Scur+2*i+1}")
        K(f"{EXP} v{Scur+8}, v{Scur+8}")
        K(f"{EXP} v{Scur+9}, v{Scur+9}")
        K("s_waitcnt lgkmcnt(0)")
        K(f"v_mfma_f32_32x32x16_bf16 {vr(O,16)}, {vr(Vc[0],4)}, {vr(P,4)}, {vr(O,16)}")
        K(f"ds_read_b128 {vr(Kp,4)}, v{kaddr} offset:{koff}")
        K(f"ds_read_b128 {vr(Vn[0],4)}, v{vaddr} offset:{voff}")
        K(f"ds_read_b128 {vr(Vn[1],4)}, v{vaddr} offset:{voff+32}")
        for i in range(10, 16): K(f"{EXP} v{Scur+i}, v{Scur+i}")
        for i in range(4, 8): K(f"v_cvt_pk_bf16_f32 v{P+i}, v{Scur+2*i}, v{Scur+2*i+1}")
        maxchain(Snext)
        K(f"v_cmp_lt_f32 vcc, {hex(f32bits(TAU))}, v{mx}")
        K(f"v_mfma_f32_32x32x16_bf16 {vr(O,16)}, {vr(Vc[1],4)}, {vr(P+4,4)}, {vr(O,16)}")
        rare_blocks.append((L_rare, L_cont, Scur, Snext))
    def setprio_alt(first):
        L1 = K.newlabel("pa"); L2 = K.newlabel("pb")
        K(f"s_cmp_lt_u32 s{s_w}, 4")
        K(f"s_cbranch_scc1 {L1}")
        K(f"s_setprio {0 if first else 1}")
        K(f"s_branch {L2}")
        K.label(L1)
        K(f"s_setprio {1 if first else 0}")
        K.label(L2)
    def loop(n_iter):
        L = K.newlabel("loop")
        K(f"s_mov_b32 s{s_it}, 0")
        K.label(L)
        if "prioalt" in opts: setprio_alt(True)
        half(Sa, Sb, Kf[1], Kf[0], Vf[0], Vf[1], 2048, 64)
        if "prioalt" in opts: setprio_alt(False)
        half(Sb, Sa, Kf[0], Kf[1], Vf[1], Vf[0], 3072, 128)
        K(f"v_add_u32 v{kaddr}, 2048, v{kaddr}")
        K(f"v_add_u32 v{vaddr}, v{vinc}, v{vaddr}")
        K(f"s_add_u32 s{s_it}, s{s_it}, 1")
        K(f"s_cmp_lt_u32 s{s_it}, {n_iter}")
        K(f"s_cbranch_scc1 {L}")
    if "prioy" in opts:
        Lp = K.newlabel("py")
        K(f"s_cmp_lt_u32 s{s_w}, 4")
        K(f"s_cbranch_scc1 {Lp}")
        K("s_setprio 1")
        K.label(Lp)
    loop(7)
    K("s_waitcnt vmcnt(0)")
    K("s_barrier")
    stamp(2)
    loop(25)
    stamp(3)
    K.flush()
    K("s_waitcnt lgkmcnt(0)")
    K(f"v_mov_b32 v{t1}, v{O+8}")
    K(f"v_mov_b32 v{t2}, v{O+8}")
    K(f"v_permlane32_swap_b32 v{t1}, v{t2}")
    K(f"v_rcp_f32 v{t1}, v{t1}")
    for i in range(8): K(f"v_mul_f32 v{O+i}, v{O+i}, v{t1}")
    for i in range(4): K(f"v_cvt_pk_bf16_f32 v{P+i}, v{O+2*i}, v{O+2*i+1}")
    K(f"v_lshlrev_b32 v{vt}, 10, v{l32}")
    K(f"v_lshl_add_u32 v{vt}, v{hh}, 3, v{vt}")
    K(f"s_lshl_b32 s{s_t}, s{s_qb}, 18")
    K(f"s_lshl_b32 s{s_t2}, s{s_w}, 15")
    K(f"s_add_u32 s{s_t}, s{s_t}, s{s_t2}")
    K(f"s_lshl_b32 s{s_t2}, s{s_h}, 5")
    K(f"s_add_u32 s{s_t}, s{s_t}, s{s_t2}")
    K(f"s_add_u32 s{s_t}, s{s_t}, {WS_O}")
    K(f"buffer_store_dwordx2 {vr(P,2)}, v{vt}, {sr(srdWS,4)}, s{s_t} offen")
    K(f"buffer_store_dwordx2 {vr(P+2,2)}, v{vt}, {sr(srdWS,4)}, s{s_t} offen offset:16")
    K("s_endpgm")
    for (L_rare, L_cont, Scur, Snext) in rare_blocks:
        K.label(L_rare); K.hist = []
        K("s_nop 15"); K("s_nop 15")
        fullmax()
        K(f"v_max_f32 v{mx}, 0, v{mx}")
        for i in range(16): K(f"v_sub_f32 v{Scur+i}, v{Scur+i}, v{mx}")
        for i in range(16): K(f"v_sub_f32 v{Cm+i}, v{Cm+i}, v{mx}")
        K(f"v_sub_f32 v{t1}, 0, v{mx}")
        K(f"v_exp_f32 v{t1}, v{t1}")
        for i in range(9): K(f"v_mul_f32 v{O+i}, v{O+i}, v{t1}")
        K.flush()
        K(f"s_branch {L_cont}")
    attn_v = V.maxused + 1
    K.label(L_conv); K.hist = []
    V2 = RA(1, 128)
    for r in (lane, l32, hh, l16x): V2.used[r] = True
    V = V2
    srdSK = S.alloc(4, 4)
    srd(K, srdSK, pSK, 512*2048*2)
    s_d, s_cb = S.alloc(), S.alloc()
    K(f"s_sub_u32 s{s_d}, s{s_w}, 8")
    K(f"s_mul_i32 s{s_cb}, s{s_d}, {CONV_SZ}")
    K(f"s_add_u32 s{s_cb}, s{s_cb}, {LCONV}")
    K(f"s_lshl_b32 s{s_t}, s2, 1")
    K(f"s_add_u32 s{s_d}, s{s_d}, s{s_t}")
    s_D = S.alloc()
    K(f"s_lshl_b32 s{s_t}, s{s_d}, 1")
    K(f"s_and_b32 s{s_t}, s{s_t}, 0xfffffffc")
    K(f"s_load_dword s{s_D}, {sr(pSD,2)}, s{s_t}")
    K(f"s_lshl_b32 s{s_t2}, s{s_d}, 12")
    K(f"s_add_u32 s{s_t2}, s{s_t2}, {WS_KVT}")
    for i in range(4):
        K(f"s_add_u32 s{s_t}, s{s_t2}, {i*1024}")
        K(f"s_add_u32 m0, s{s_cb}, {CONV_U + i*1024}")
        K(f"buffer_load_dwordx4 v{l16x}, {sr(srdWS,4)}, s{s_t} offen lds")
    hr = V.alloc(16, 4); hx = V.alloc(); l64 = V.alloc()
    K(f"v_lshlrev_b32 v{l64}, 6, v{lane}")
    K(f"s_lshl_b32 s{s_t}, s{s_d}, 12")
    for i in range(4):
        K(f"buffer_load_dwordx4 {vr(hr+4*i,4)}, v{l64}, {sr(srdSK,4)}, s{s_t} offen offset:{16*i}")
    K(f"buffer_load_dword v{hx}, v{l64}, {sr(srdSK,4)}, s{s_t} offen offset:64")
    K("s_barrier")
    z4 = V.alloc(4, 4); va = V.alloc()
    for i in range(4): K(f"v_mov_b32 v{z4+i}, 0")
    K(f"v_add_u32 v{va}, s{s_cb}, v{l16x}")
    K(f"ds_write_b128 v{va}, {vr(z4,4)} offset:{CONV_U+4096}")
    K(f"ds_write_b128 v{va}, {vr(z4,4)} offset:{CONV_U+5120}")
    K("s_waitcnt vmcnt(0) lgkmcnt(0)")
    K(f"s_and_b32 s{s_t}, s{s_d}, 1")
    K(f"s_lshl_b32 s{s_t}, s{s_t}, 4")
    K(f"s_lshr_b32 s{s_D}, s{s_D}, s{s_t}")
    K(f"s_lshl_b32 s{s_D}, s{s_D}, 16")
    vh = V.alloc()
    K(f"v_add_u32 v{vh}, s{s_cb}, v{l64}")
    for i in range(4):
        K(f"ds_write_b128 v{vh}, {vr(hr+4*i,4)} offset:{CONV_H0 + 64 + 16*i}")
    h1 = V.alloc(16, 4)
    for j in range(16):
        nxt = hr + j + 1 if j < 15 else hx
        K(f"v_alignbit_b32 v{h1+j}, v{nxt}, v{hr+j}, 16")
    for i in range(4):
        K(f"ds_write_b128 v{vh}, {vr(h1+4*i,4)} offset:{CONV_H1 + 64 + 16*i}")
    K("s_mov_b64 exec, 1")
    K(f"v_lshlrev_b32 v{hx}, 16, v{hr}")
    vb = V.alloc()
    K(f"v_mov_b32 v{vb}, s{s_cb}")
    for i in range(4):
        K(f"ds_write_b128 v{vb}, {vr(z4,4)} offset:{CONV_H0 + 16*i}")
    for i in range(3):
        K(f"ds_write_b128 v{vb}, {vr(z4,4)} offset:{CONV_H1 + 16*i}")
    K(f"v_mov_b32 v{z4+3}, v{hx}")
    K(f"ds_write_b128 v{vb}, {vr(z4,4)} offset:{CONV_H1 + 48}")
    K("s_mov_b64 exec, -1")
    K("s_waitcnt lgkmcnt(0)")
    K("s_barrier")
    if "noconv" in opts: K("s_endpgm")
    for x in (hr,): V.free(x, 16)
    V.free(h1, 16); V.free(hx); V.free(vh); V.free(vb)
    aad, bad, tq = V.alloc(), V.alloc(), V.alloc()
    K(f"v_lshlrev_b32 v{aad}, 1, v{l32}")
    K(f"v_lshlrev_b32 v{tq}, 4, v{hh}")
    K(f"v_sub_u32 v{aad}, v{aad}, v{tq}")
    K(f"v_and_b32 v{tq}, 1, v{l32}")
    K(f"v_cmp_eq_u32 vcc, 1, v{tq}")
    o_odd = CONV_H0 + (-16 - 7 + 32) * 2
    o_even = CONV_H1 + (-16 - 7 + 31) * 2
    K(f"v_mov_b32 v{tq}, {o_even}")
    K(f"v_mov_b32 v{bad}, {o_odd}")
    K(f"v_cndmask_b32 v{tq}, v{tq}, v{bad}, vcc")
    K(f"v_add_u32 v{aad}, v{aad}, v{tq}")
    K(f"v_add_u32 v{aad}, s{s_cb}, v{aad}")
    K(f"v_lshlrev_b32 v{bad}, 6, v{l32}")
    K(f"v_lshl_add_u32 v{bad}, v{hh}, 4, v{bad}")
    K(f"v_sub_u32 v{bad}, {CONV_U + 4080 - 2048 - 32}, v{bad}")
    K(f"v_add_u32 v{bad}, s{s_cb}, v{bad}")
    Y = [V.alloc(16, 4), V.alloc(16, 4)]
    for c in range(2):
        for i in range(16): K(f"v_mov_b32 v{Y[c]+i}, 0")
    fa = [[V.alloc(4, 4), V.alloc(4, 4)] for _ in range(2)]
    fb = [[[V.alloc(4, 4), V.alloc(4, 4)] for _ in range(2)] for _ in range(2)]
    def rd(u, buf, both):
        for q in range(2):
            o = 16*u + (8 if q == 0 else 0)
            K(f"ds_read2_b32 {vr(fa[buf][q],2)}, v{aad} offset0:{o} offset1:{o+1}")
            K(f"ds_read2_b32 {vr(fa[buf][q]+2,2)}, v{aad} offset0:{o+2} offset1:{o+3}")
        for c in ((0, 1) if both else (1,)):
            for q in range(2):
                K(f"ds_read_b128 {vr(fb[buf][c][q],4)}, v{bad} offset:{64*u + (32 if q == 0 else 0) + (2048 if c == 0 else 0)}")
    s_ci = S.alloc()
    def cloop(n_iter, both):
        nrd = 4 + (4 if both else 2)
        L = K.newlabel("cloop")
        K(f"s_mov_b32 s{s_ci}, 0")
        K.label(L)
        rd(0, 0, both)
        for u in range(8):
            buf = u & 1
            if u < 7:
                rd(u + 1, buf ^ 1, both)
                K(f"s_waitcnt lgkmcnt({nrd})")
            else:
                K("s_waitcnt lgkmcnt(0)")
            for c in ((0, 1) if both else (1,)):
                for q in range(2):
                    K(f"v_mfma_f32_32x32x16_bf16 {vr(Y[c],16)}, {vr(fa[buf][q],4)}, {vr(fb[buf][c][q],4)}, {vr(Y[c],16)}")
        K(f"v_add_u32 v{aad}, 512, v{aad}")
        K(f"v_add_u32 v{bad}, 512, v{bad}")
        K(f"s_add_u32 s{s_ci}, s{s_ci}, 1")
        K(f"s_cmp_lt_u32 s{s_ci}, {n_iter}")
        K(f"s_cbranch_scc1 {L}")
    cloop(4, True)
    cloop(4, False)
    K.flush()
    ua = V.alloc(); sa_ = V.alloc(); ur = V.alloc(2, 2); uf = [V.alloc() for _ in range(4)]; tt = V.alloc(); op = V.alloc(2, 2)
    K(f"v_lshlrev_b32 v{ua}, 6, v{l32}")
    K(f"v_lshl_add_u32 v{ua}, v{hh}, 3, v{ua}")
    K(f"v_sub_u32 v{ua}, {CONV_U + 4088 - 2048 - 48}, v{ua}")
    K(f"v_add_u32 v{ua}, s{s_cb}, v{ua}")
    K(f"v_lshlrev_b32 v{sa_}, 6, v{l32}")
    K(f"v_lshl_add_u32 v{sa_}, v{hh}, 3, v{sa_}")
    K(f"s_lshl_b32 s{s_t2}, s{s_d}, 12")
    K(f"s_add_u32 s{s_t2}, s{s_t2}, {WS_ZT}")
    for c in range(2):
        for g in range(4):
            y = Y[c] + 4*g
            K(f"ds_read_b64 {vr(ur,2)}, v{ua} offset:{(2048 if c == 0 else 0) + 16*(3-g)}")
            rnd2(K, y, y+1, tt); rnd2(K, y+2, y+3, tt)
            K("s_waitcnt lgkmcnt(0)")
            unpack(K, uf[3], ur, 0); unpack(K, uf[2], ur, 1); unpack(K, uf[1], ur+1, 0); unpack(K, uf[0], ur+1, 1)
            for i in range(4): K(f"v_mul_f32 v{uf[i]}, s{s_D}, v{uf[i]}")
            rnd2(K, uf[0], uf[1], tt); rnd2(K, uf[2], uf[3], tt)
            for i in range(4): K(f"v_add_f32 v{y+i}, v{y+i}, v{uf[i]}")
            K(f"v_cvt_pk_bf16_f32 v{op}, v{y}, v{y+1}")
            K(f"v_cvt_pk_bf16_f32 v{op+1}, v{y+2}, v{y+3}")
            K(f"s_add_u32 s{s_t}, s{s_t2}, {c*2048 + g*16}")
            K(f"buffer_store_dwordx2 {vr(op,2)}, v{sa_}, {sr(srdWS,4)}, s{s_t} offen")
    K.label(L_end); K.hist = []
    K("s_endpgm")
    return K, max(attn_v, V.maxused + 1), S.maxused + 1
```

```python
import sys
sys.path.insert(0, "gen")
from asmlib import *
from common import *
import l1, l2
HEADER = open("gated_mix__ssm_conv_h3__softmax_full_mha__prompt.s.ref").read().split("; Override launch geometry")[0]
def build(parts):
    out = HEADER
    for K, nv, ns, grid, blk, lds in parts:
        out += f"; @launch kernel={K.name} grid=({grid},1,1) block=({blk},1,1) lds={lds}\n"
    out += '.amdgcn_target "amdgcn-amd-amdhsa--gfx950"\n.text\n'
    for K, nv, ns, grid, blk, lds in parts:
        out += K.text()
        out += descriptor(K.name, nv, max(ns, 16))
    return out
if __name__ == "__main__":
    parts = []
    which = sys.argv[2].split(",") if len(sys.argv) > 2 else ["l1", "l2", "l3"]
    if "l1" in which:
        K, nv, ns = l1.gen_l1(tuple(sys.argv[3].split(',')) if len(sys.argv) > 3 else ()); print("l1 vgpr", nv, "sgpr", ns, "nops", K.nops_added, file=sys.stderr)
        parts.append((K, nv, ns, l1.N_GEMM_WG + l1.N_PREP_WG, l1.L1_BLOCK, l1.L1_LDS))
    if "l2" in which:
        K, nv, ns = l2.gen_l2(tuple(sys.argv[3].split(',')) if len(sys.argv) > 3 else ()); print("l2 vgpr", nv, "sgpr", ns, "nops", K.nops_added, file=sys.stderr)
        parts.append((K, nv, ns, 256, 1024 if 'dup16' in (sys.argv[3] if len(sys.argv) > 3 else '') else 640, l2.L2_LDS))
    if "l3" in which:
        import l3
        K, nv, ns = l3.gen_l3(); print("l3 vgpr", nv, "sgpr", ns, "nops", K.nops_added, file=sys.stderr)
        parts.append((K, nv, ns, 256, 256, l3.L3_LDS))
    open(sys.argv[1], "w").write(build(parts))
```

```python
from asmlib import *
from common import *
import struct
def f32bits(x): return struct.unpack("<I", struct.pack("<f", x))[0]

LK = 0
LV = 65536
VROW = 4112
LCONV = LV + 16 * VROW
CONV_U, CONV_H0, CONV_H1, CONV_SZ = 0, 6144, 6144 + 4224, 6144 + 2 * 4224
LCONST = LCONV + 2 * CONV_SZ
L2_LDS = LCONST + 512
TAU = 10.0
QSCALE = 0.25 * LOG2E

def gen_l2(opts=()):
    K = Kern("k2_attn_conv_kernel")
    V = RA(1, 128); S = RA(3, 100)
    K.raw(".globl k2_attn_conv_kernel\n.p2align 8\n.type k2_attn_conv_kernel,@function\nk2_attn_conv_kernel:")
    L_conv, L_end = K.newlabel("conv"), K.newlabel("end")
    K("s_cmp_ge_u32 s2, 256")
    K(f"s_cbranch_scc1 {L_end}")
    pWS, pSK, pSD = S.alloc(2,2), S.alloc(2,2), S.alloc(2,2)
    K(f"s_load_dwordx2 {sr(pWS,2)}, s[0:1], {KA_WS}")
    K(f"s_load_dwordx2 {sr(pSK,2)}, s[0:1], {KA_SSMK}")
    K(f"s_load_dwordx2 {sr(pSD,2)}, s[0:1], {KA_SSMD}")
    lane = V.alloc(); s_w = S.alloc()
    K(f"v_lshrrev_b32 v{lane}, 6, v0")
    K(f"v_readfirstlane_b32 s{s_w}, v{lane}")
    K(f"v_and_b32 v{lane}, 63, v0")
    l32 = V.alloc(); hh = V.alloc(); l16x = V.alloc()
    K(f"v_and_b32 v{l32}, 31, v{lane}")
    K(f"v_lshrrev_b32 v{hh}, 5, v{lane}")
    K(f"v_lshlrev_b32 v{l16x}, 4, v{lane}")
    K("s_waitcnt lgkmcnt(0)")
    srdWS = S.alloc(4, 4)
    srd(K, srdWS, pWS, WS_END)
    stamps = "stamps" in opts
    if stamps:
        pDBG = S.alloc(2, 2); srdDBG = S.alloc(4, 4); s_ts = S.alloc(2, 2); v_ts = V.alloc(); v_z = V.alloc()
        srd(K, srdDBG, pWS, 0xE00000)
    def stamp(i):
        if not stamps: return
        K(f"s_memrealtime {sr(s_ts,2)}")
        K("s_waitcnt lgkmcnt(0)")
        K(f"v_mov_b32 v{v_ts}, s{s_ts}")
        K(f"v_mov_b32 v{v_z}, 0")
        K(f"s_mul_i32 s{s_ts+1}, s{s_w}, 16")
        K(f"s_mul_i32 s{s_ts}, s2, 256")
        K(f"s_add_u32 s{s_ts+1}, s{s_ts+1}, s{s_ts}")
        K(f"s_add_u32 s{s_ts+1}, s{s_ts+1}, 0xD00000")
        K("s_mov_b64 exec, 1")
        K(f"buffer_store_dword v{v_ts}, v{v_z}, {sr(srdDBG,4)}, s{s_ts+1} offen offset:{4*i}")
        K("s_mov_b64 exec, -1")
    stamp(0)
    if "dup16" in opts:
        K(f"s_and_b32 s{s_w}, s{s_w}, 7")
    K(f"s_cmp_ge_u32 s{s_w}, 8")
    K(f"s_cbranch_scc1 {L_conv}")
    s_h, s_qb, s_t, s_t2 = S.alloc(), S.alloc(), S.alloc(), S.alloc()
    K(f"s_and_b32 s{s_h}, s2, 31")
    K(f"s_lshr_b32 s{s_qb}, s2, 5")
    Qf = V.alloc(4, 4); vt = V.alloc()
    K(f"v_lshlrev_b32 v{vt}, 5, v{l32}")
    K(f"v_lshl_add_u32 v{vt}, v{hh}, 4, v{vt}")
    K(f"s_lshl_b32 s{s_t}, s{s_h}, 16")
    K(f"s_lshl_b32 s{s_t2}, s{s_qb}, 13")
    K(f"s_add_u32 s{s_t}, s{s_t}, s{s_t2}")
    K(f"s_lshl_b32 s{s_t2}, s{s_w}, 10")
    K(f"s_add_u32 s{s_t}, s{s_t}, s{s_t2}")
    K(f"s_add_u32 s{s_t}, s{s_t}, {WS_Q}")
    K(f"buffer_load_dwordx4 {vr(Qf,4)}, v{vt}, {sr(srdWS,4)}, s{s_t} offen")
    s_kb, s_vb, s_wl = S.alloc(), S.alloc(), S.alloc()
    K(f"s_lshl_b32 s{s_kb}, s{s_h}, 16")
    K(f"s_add_u32 s{s_kb}, s{s_kb}, {WS_K}")
    K(f"s_lshl_b32 s{s_t}, s{s_w}, 11")
    K(f"s_add_u32 s{s_kb}, s{s_kb}, s{s_t}")
    K(f"s_lshl_b32 s{s_vb}, s{s_h}, 16")
    K(f"s_add_u32 s{s_vb}, s{s_vb}, {WS_VT}")
    K(f"s_lshl_b32 s{s_t}, s{s_w}, 13")
    K(f"s_add_u32 s{s_vb}, s{s_vb}, s{s_t}")
    K(f"s_lshl_b32 s{s_wl}, s{s_w}, 11")
    s_wv = S.alloc()
    K(f"s_mul_i32 s{s_wv}, s{s_w}, {2*VROW}")
    for c in range(4):
        for i in range(2):
            K(f"s_add_u32 s{s_t}, s{s_kb}, {c*16384 + i*1024}")
            K(f"s_add_u32 m0, s{s_wl}, {LK + c*16384 + i*1024}")
            K(f"buffer_load_dwordx4 v{l16x}, {sr(srdWS,4)}, s{s_t} offen lds")
        for i in range(2):
            K(f"s_add_u32 s{s_t}, s{s_vb}, {i*4096 + c*1024}")
            K(f"s_add_u32 m0, s{s_wv}, {LV + i*VROW + c*1024}")
            K(f"buffer_load_dwordx4 v{l16x}, {sr(srdWS,4)}, s{s_t} offen lds")
    Cm = V.alloc(16, 4); O = V.alloc(16, 4); Sa = V.alloc(16, 4); Sb = V.alloc(16, 4)
    Kf = [V.alloc(4, 4), V.alloc(4, 4)]
    Vf = [[V.alloc(4, 4), V.alloc(4, 4)], [V.alloc(4, 4), V.alloc(4, 4)]]
    P = V.alloc(8, 4)
    kaddr, vaddr, mx, t1 = V.alloc(), V.alloc(), V.alloc(), V.alloc(2, 2)
    t2 = t1 + 1
    for i in range(16): K(f"v_mov_b32 v{O+i}, 0")
    K(f"v_cmp_eq_u32 vcc, 16, v{l32}")
    K(f"v_mov_b32 v{t1}, 0x3f803f80")
    K(f"v_cndmask_b32 v{t2}, 0, v{t1}, vcc")
    for b in range(2):
        for j in range(2):
            for i in range(4): K(f"v_mov_b32 v{Vf[b][j]+i}, v{t2}")
    K(f"v_lshlrev_b32 v{kaddr}, 5, v{l32}")
    K(f"v_lshl_add_u32 v{kaddr}, v{hh}, 4, v{kaddr}")
    s_vr = S.alloc()
    K(f"s_mov_b32 s{s_vr}, {VROW}")
    K(f"v_mul_lo_u32 v{vaddr}, v{l32}, s{s_vr}")
    K(f"v_lshl_add_u32 v{vaddr}, v{hh}, 4, v{vaddr}")
    K(f"v_add_u32 v{vaddr}, {LV}, v{vaddr}")
    vinc = V.alloc()
    K(f"v_cmp_lt_u32 vcc, 15, v{l32}")
    K(f"v_lshlrev_b32 v{t1}, 4, v{hh}")
    K(f"v_add_u32 v{t1}, {LCONST + 256}, v{t1}")
    K(f"v_cndmask_b32 v{vaddr}, v{vaddr}, v{t1}, vcc")
    K(f"v_mov_b32 v{t1}, 128")
    K(f"v_cndmask_b32 v{vinc}, v{t1}, 0, vcc")
    K(f"v_cmp_eq_u32 vcc, 16, v{l32}")
    K(f"v_lshlrev_b32 v{t1}, 4, v{hh}")
    K(f"v_add_u32 v{t1}, {LCONST}, v{t1}")
    K(f"v_cndmask_b32 v{vaddr}, v{vaddr}, v{t1}, vcc")
    K(f"v_cmp_gt_u32 vcc, 32, v{lane}")
    K(f"v_mov_b32 v{t1}, 0x3f803f80")
    K(f"v_cndmask_b32 v{t1}, 0, v{t1}, vcc")
    K(f"v_mov_b32 v{t2}, v{t1}")
    K(f"v_lshlrev_b32 v{vt}, 3, v{lane}")
    K(f"v_add_u32 v{vt}, {LCONST}, v{vt}")
    K(f"ds_write_b64 v{vt}, {vr(t1,2)}")
    s_vm = S.alloc(2, 2)
    K(f"s_mov_b32 s{s_vm}, 0x0000ffff")
    K(f"s_mov_b32 s{s_vm+1}, 0x0000ffff")
    K("s_waitcnt vmcnt(16)")
    qa = [V.alloc() for _ in range(2)]
    for i in range(4):
        unpack(K, qa[0], Qf + i, 0); unpack(K, qa[1], Qf + i, 1)
        K(f"v_mul_f32 v{qa[0]}, {hex(f32bits(QSCALE))}, v{qa[0]}")
        K(f"v_mul_f32 v{qa[1]}, {hex(f32bits(QSCALE))}, v{qa[1]}")
        K(f"v_cvt_pk_bf16_f32 v{Qf+i}, v{qa[0]}, v{qa[1]}")
    for x in qa: V.free(x)
    qn = V.alloc()
    K(f"v_mov_b32 v{qn}, 0")
    for i in range(4): K(f"v_dot2_f32_bf16 v{qn}, v{Qf+i}, v{Qf+i}, v{qn}")
    K("s_waitcnt vmcnt(12) lgkmcnt(0)")
    K("s_barrier")
    stamp(1)
    K(f"ds_read_b128 {vr(Kf[0],4)}, v{kaddr}")
    for i in range(16): K(f"v_mov_b32 v{Cm+i}, 0")
    K("s_waitcnt lgkmcnt(0)")
    K(f"v_mfma_f32_32x32x16_bf16 {vr(Sa,16)}, {vr(Kf[0],4)}, {vr(Qf,4)}, {vr(Cm,16)}")
    def maxchain(Sx):
        K(f"v_max3_f32 v{mx}, v{Sx}, v{Sx+1}, v{Sx+2}")
        for i in range(3, 15, 2): K(f"v_max3_f32 v{mx}, v{mx}, v{Sx+i}, v{Sx+i+1}")
        K(f"v_max_f32 v{mx}, v{mx}, v{Sx+15}")
    def fullmax():
        K(f"v_mov_b32 v{t1}, v{mx}")
        K(f"v_mov_b32 v{t2}, v{mx}")
        K(f"v_permlane32_swap_b32 v{t1}, v{t2}")
        K(f"v_max_f32 v{mx}, v{t1}, v{t2}")
    maxchain(Sa); fullmax()
    for i in range(16): K(f"v_sub_f32 v{Cm+i}, 0, v{mx}")
    K(f"v_mfma_f32_32x32x16_bf16 {vr(Sa,16)}, {vr(Kf[0],4)}, {vr(Qf,4)}, {vr(Cm,16)}")
    K(f"ds_read_b128 {vr(Kf[1],4)}, v{kaddr} offset:1024")
    K(f"ds_read_b128 {vr(Vf[0][0],4)}, v{vaddr}")
    K(f"ds_read_b128 {vr(Vf[0][1],4)}, v{vaddr} offset:32")
    maxchain(Sa)
    K(f"v_cmp_lt_f32 vcc, {hex(f32bits(TAU))}, v{mx}")
    s_it = S.alloc()
    rare_blocks = []
    def half(Scur, Snext, Kn, Kp, Vc, Vn, koff, voff, checked=True):
        L_rare, L_cont = K.newlabel("rare"), K.newlabel("cont")
        EXP = "v_mov_b32" if "noexp" in opts else "v_exp_f32"
        if checked:
            K(f"s_cbranch_vccnz {L_rare}")
            K.label(L_cont)
        for i in range(4): K(f"{EXP} v{Scur+i}, v{Scur+i}")
        K("s_waitcnt lgkmcnt(2)")
        K(f"v_mfma_f32_32x32x16_bf16 {vr(Snext,16)}, {vr(Kn,4)}, {vr(Qf,4)}, {vr(Cm,16)}")
        for i in range(4, 8): K(f"{EXP} v{Scur+i}, v{Scur+i}")
        for i in range(4): K(f"v_cvt_pk_bf16_f32 v{P+i}, v{Scur+2*i}, v{Scur+2*i+1}")
        K(f"{EXP} v{Scur+8}, v{Scur+8}")
        K(f"{EXP} v{Scur+9}, v{Scur+9}")
        K("s_waitcnt lgkmcnt(0)")
        K(f"v_mfma_f32_32x32x16_bf16 {vr(O,16)}, {vr(Vc[0],4)}, {vr(P,4)}, {vr(O,16)}")
        K(f"ds_read_b128 {vr(Kp,4)}, v{kaddr} offset:{koff}")
        K(f"ds_read_b128 {vr(Vn[0],4)}, v{vaddr} offset:{voff}")
        K(f"ds_read_b128 {vr(Vn[1],4)}, v{vaddr} offset:{voff+32}")
        for i in range(10, 16): K(f"{EXP} v{Scur+i}, v{Scur+i}")
        for i in range(4, 8): K(f"v_cvt_pk_bf16_f32 v{P+i}, v{Scur+2*i}, v{Scur+2*i+1}")
        if checked:
            maxchain(Snext)
            K(f"v_cmp_lt_f32 vcc, {hex(f32bits(TAU))}, v{mx}")
        K(f"v_mfma_f32_32x32x16_bf16 {vr(O,16)}, {vr(Vc[1],4)}, {vr(P+4,4)}, {vr(O,16)}")
        if checked: rare_blocks.append((L_rare, L_cont, Scur, Snext))
    def setprio_alt(first):
        L1 = K.newlabel("pa"); L2 = K.newlabel("pb")
        K(f"s_cmp_lt_u32 s{s_w}, 4")
        K(f"s_cbranch_scc1 {L1}")
        K(f"s_setprio {0 if first else 1}")
        K(f"s_branch {L2}")
        K.label(L1)
        K(f"s_setprio {1 if first else 0}")
        K.label(L2)
    def loop(n_iter, checked=True):
        L = K.newlabel("loop")
        K(f"s_mov_b32 s{s_it}, 0")
        K.label(L)
        if "prioalt" in opts: setprio_alt(True)
        half(Sa, Sb, Kf[1], Kf[0], Vf[0], Vf[1], 2048, 64, checked)
        if "prioalt" in opts: setprio_alt(False)
        half(Sb, Sa, Kf[0], Kf[1], Vf[1], Vf[0], 3072, 128, checked)
        K(f"v_add_u32 v{kaddr}, 2048, v{kaddr}")
        K(f"v_add_u32 v{vaddr}, v{vinc}, v{vaddr}")
        K(f"s_add_u32 s{s_it}, s{s_it}, 1")
        K(f"s_cmp_lt_u32 s{s_it}, {n_iter}")
        K(f"s_cbranch_scc1 {L}")
    if "prioy" in opts:
        Lp = K.newlabel("py")
        K(f"s_cmp_lt_u32 s{s_w}, 4")
        K(f"s_cbranch_scc1 {Lp}")
        K("s_setprio 1")
        K.label(Lp)
    loop(7)
    K("s_waitcnt vmcnt(0)")
    K("s_barrier")
    stamp(2)
    if "nobound" in opts:
        loop(25)
    else:
        kn = V.alloc(); ka = V.alloc()
        K(f"v_lshlrev_b32 v{ka}, 5, v{lane}")
        K(f"s_lshl_b32 s{s_t}, s{s_w}, 13")
        K(f"v_add_u32 v{ka}, s{s_t}, v{ka}")
        K(f"v_mov_b32 v{kn}, 0")
        for j in range(4):
            K(f"ds_read_b128 {vr(P,4)}, v{ka} offset:{j*2048}")
            K(f"ds_read_b128 {vr(P+4,4)}, v{ka} offset:{j*2048+16}")
            K(f"v_mov_b32 v{t1}, 0")
            K("s_waitcnt lgkmcnt(0)")
            for i in range(8): K(f"v_dot2_f32_bf16 v{t1}, v{P+i}, v{P+i}, v{t1}")
            K(f"v_max_f32 v{kn}, v{kn}, v{t1}")
        for off in (0x041F, 0x081F, 0x101F, 0x201F, 0x401F):
            K(f"ds_swizzle_b32 v{t1}, v{kn} offset:{off}")
            K("s_waitcnt lgkmcnt(0)")
            K(f"v_max_f32 v{kn}, v{kn}, v{t1}")
        K(f"v_mov_b32 v{t1}, v{kn}"); K(f"v_mov_b32 v{t2}, v{kn}")
        K(f"v_permlane32_swap_b32 v{t1}, v{t2}")
        K(f"v_max_f32 v{kn}, v{t1}, v{t2}")
        K(f"s_mul_i32 s{s_t}, s{s_w}, {VROW}")
        K(f"s_add_u32 s{s_t}, s{s_t}, {LV + 4096}")
        K(f"v_mov_b32 v{ka}, s{s_t}")
        K(f"ds_write_b32 v{ka}, v{kn}")
        K("s_waitcnt lgkmcnt(0)")
        K("s_barrier")
        K(f"v_mov_b32 v{ka}, {LV + 4096}")
        for j in range(8):
            K(f"ds_read_b32 v{P+j}, v{ka} offset:{j*VROW}")
        K("s_waitcnt lgkmcnt(0)")
        for j in range(8): K(f"v_max_f32 v{kn}, v{kn}, v{P+j}")
        K(f"v_mov_b32 v{t1}, v{qn}"); K(f"v_mov_b32 v{t2}, v{qn}")
        K(f"v_permlane32_swap_b32 v{t1}, v{t2}")
        K(f"v_add_f32 v{t1}, v{t1}, v{t2}")
        K(f"v_mul_f32 v{t1}, v{t1}, v{kn}")
        K(f"v_sqrt_f32 v{t1}, v{t1}")
        K(f"v_add_f32 v{t1}, v{t1}, v{Cm}")
        K(f"v_cmp_lt_f32 vcc, 60.0, v{t1}") if False else K(f"v_cmp_lt_f32 vcc, {hex(f32bits(60.0))}, v{t1}")
        Lchk, Ldone = K.newlabel("chk"), K.newlabel("adone")
        K(f"s_cbranch_vccnz {Lchk}")
        loop(25, False)
        K(f"s_branch {Ldone}")
        K.label(Lchk)
        maxchain(Sa)
        K(f"v_cmp_lt_f32 vcc, {hex(f32bits(TAU))}, v{mx}")
        loop(25, True)
        K.label(Ldone)
        V.free(kn); V.free(ka)
    stamp(3)
    K.flush()
    K("s_waitcnt lgkmcnt(0)")
    K(f"v_mov_b32 v{t1}, v{O+8}")
    K(f"v_mov_b32 v{t2}, v{O+8}")
    K(f"v_permlane32_swap_b32 v{t1}, v{t2}")
    K(f"v_rcp_f32 v{t1}, v{t1}")
    for i in range(8): K(f"v_mul_f32 v{O+i}, v{O+i}, v{t1}")
    for i in range(4): K(f"v_cvt_pk_bf16_f32 v{P+i}, v{O+2*i}, v{O+2*i+1}")
    K(f"v_lshlrev_b32 v{vt}, 10, v{l32}")
    K(f"v_lshl_add_u32 v{vt}, v{hh}, 3, v{vt}")
    K(f"s_lshl_b32 s{s_t}, s{s_qb}, 18")
    K(f"s_lshl_b32 s{s_t2}, s{s_w}, 15")
    K(f"s_add_u32 s{s_t}, s{s_t}, s{s_t2}")
    K(f"s_lshl_b32 s{s_t2}, s{s_h}, 5")
    K(f"s_add_u32 s{s_t}, s{s_t}, s{s_t2}")
    K(f"s_add_u32 s{s_t}, s{s_t}, {WS_O}")
    K(f"buffer_store_dwordx2 {vr(P,2)}, v{vt}, {sr(srdWS,4)}, s{s_t} offen")
    K(f"buffer_store_dwordx2 {vr(P+2,2)}, v{vt}, {sr(srdWS,4)}, s{s_t} offen offset:16")
    K("s_endpgm")
    for (L_rare, L_cont, Scur, Snext) in rare_blocks:
        K.label(L_rare); K.hist = []
        K("s_nop 15"); K("s_nop 15")
        fullmax()
        K(f"v_max_f32 v{mx}, 0, v{mx}")
        for i in range(16): K(f"v_sub_f32 v{Scur+i}, v{Scur+i}, v{mx}")
        for i in range(16): K(f"v_sub_f32 v{Cm+i}, v{Cm+i}, v{mx}")
        K(f"v_sub_f32 v{t1}, 0, v{mx}")
        K(f"v_exp_f32 v{t1}, v{t1}")
        for i in range(9): K(f"v_mul_f32 v{O+i}, v{O+i}, v{t1}")
        K.flush()
        K(f"s_branch {L_cont}")
    attn_v = V.maxused + 1
    K.label(L_conv); K.hist = []
    V2 = RA(1, 128)
    for r in (lane, l32, hh, l16x): V2.used[r] = True
    V = V2
    srdSK = S.alloc(4, 4)
    srd(K, srdSK, pSK, 512*2048*2)
    s_d, s_cb = S.alloc(), S.alloc()
    K(f"s_sub_u32 s{s_d}, s{s_w}, 8")
    K(f"s_mul_i32 s{s_cb}, s{s_d}, {CONV_SZ}")
    K(f"s_add_u32 s{s_cb}, s{s_cb}, {LCONV}")
    K(f"s_lshl_b32 s{s_t}, s2, 1")
    K(f"s_add_u32 s{s_d}, s{s_d}, s{s_t}")
    s_D = S.alloc()
    K(f"s_lshl_b32 s{s_t}, s{s_d}, 1")
    K(f"s_and_b32 s{s_t}, s{s_t}, 0xfffffffc")
    K(f"s_load_dword s{s_D}, {sr(pSD,2)}, s{s_t}")
    K(f"s_lshl_b32 s{s_t2}, s{s_d}, 12")
    K(f"s_add_u32 s{s_t2}, s{s_t2}, {WS_KVT}")
    for i in range(4):
        K(f"s_add_u32 s{s_t}, s{s_t2}, {i*1024}")
        K(f"s_add_u32 m0, s{s_cb}, {CONV_U + i*1024}")
        K(f"buffer_load_dwordx4 v{l16x}, {sr(srdWS,4)}, s{s_t} offen lds")
    hr = V.alloc(16, 4); hx = V.alloc(); l64 = V.alloc()
    K(f"v_lshlrev_b32 v{l64}, 6, v{lane}")
    K(f"s_lshl_b32 s{s_t}, s{s_d}, 12")
    for i in range(4):
        K(f"buffer_load_dwordx4 {vr(hr+4*i,4)}, v{l64}, {sr(srdSK,4)}, s{s_t} offen offset:{16*i}")
    K(f"buffer_load_dword v{hx}, v{l64}, {sr(srdSK,4)}, s{s_t} offen offset:64")
    K("s_barrier")
    z4 = V.alloc(4, 4); va = V.alloc()
    for i in range(4): K(f"v_mov_b32 v{z4+i}, 0")
    K(f"v_add_u32 v{va}, s{s_cb}, v{l16x}")
    K(f"ds_write_b128 v{va}, {vr(z4,4)} offset:{CONV_U+4096}")
    K(f"ds_write_b128 v{va}, {vr(z4,4)} offset:{CONV_U+5120}")
    K("s_waitcnt vmcnt(0) lgkmcnt(0)")
    K(f"s_and_b32 s{s_t}, s{s_d}, 1")
    K(f"s_lshl_b32 s{s_t}, s{s_t}, 4")
    K(f"s_lshr_b32 s{s_D}, s{s_D}, s{s_t}")
    K(f"s_lshl_b32 s{s_D}, s{s_D}, 16")
    vh = V.alloc()
    K(f"v_add_u32 v{vh}, s{s_cb}, v{l64}")
    for i in range(4):
        K(f"ds_write_b128 v{vh}, {vr(hr+4*i,4)} offset:{CONV_H0 + 64 + 16*i}")
    h1 = V.alloc(16, 4)
    for j in range(16):
        nxt = hr + j + 1 if j < 15 else hx
        K(f"v_alignbit_b32 v{h1+j}, v{nxt}, v{hr+j}, 16")
    for i in range(4):
        K(f"ds_write_b128 v{vh}, {vr(h1+4*i,4)} offset:{CONV_H1 + 64 + 16*i}")
    K("s_mov_b64 exec, 1")
    K(f"v_lshlrev_b32 v{hx}, 16, v{hr}")
    vb = V.alloc()
    K(f"v_mov_b32 v{vb}, s{s_cb}")
    for i in range(4):
        K(f"ds_write_b128 v{vb}, {vr(z4,4)} offset:{CONV_H0 + 16*i}")
    for i in range(3):
        K(f"ds_write_b128 v{vb}, {vr(z4,4)} offset:{CONV_H1 + 16*i}")
    K(f"v_mov_b32 v{z4+3}, v{hx}")
    K(f"ds_write_b128 v{vb}, {vr(z4,4)} offset:{CONV_H1 + 48}")
    K("s_mov_b64 exec, -1")
    K("s_waitcnt lgkmcnt(0)")
    K("s_barrier")
    if "nobound" not in opts: K("s_barrier")
    if "noconv" in opts: K("s_endpgm")
    for x in (hr,): V.free(x, 16)
    V.free(h1, 16); V.free(hx); V.free(vh); V.free(vb)
    aad, bad, tq = V.alloc(), V.alloc(), V.alloc()
    K(f"v_lshlrev_b32 v{aad}, 1, v{l32}")
    K(f"v_lshlrev_b32 v{tq}, 4, v{hh}")
    K(f"v_sub_u32 v{aad}, v{aad}, v{tq}")
    K(f"v_and_b32 v{tq}, 1, v{l32}")
    K(f"v_cmp_eq_u32 vcc, 1, v{tq}")
    o_odd = CONV_H0 + (-16 - 7 + 32) * 2
    o_even = CONV_H1 + (-16 - 7 + 31) * 2
    K(f"v_mov_b32 v{tq}, {o_even}")
    K(f"v_mov_b32 v{bad}, {o_odd}")
    K(f"v_cndmask_b32 v{tq}, v{tq}, v{bad}, vcc")
    K(f"v_add_u32 v{aad}, v{aad}, v{tq}")
    K(f"v_add_u32 v{aad}, s{s_cb}, v{aad}")
    K(f"v_lshlrev_b32 v{bad}, 6, v{l32}")
    K(f"v_lshl_add_u32 v{bad}, v{hh}, 4, v{bad}")
    K(f"v_sub_u32 v{bad}, {CONV_U + 4080 - 2048 - 32}, v{bad}")
    K(f"v_add_u32 v{bad}, s{s_cb}, v{bad}")
    Y = [V.alloc(16, 4), V.alloc(16, 4)]
    for c in range(2):
        for i in range(16): K(f"v_mov_b32 v{Y[c]+i}, 0")
    fa = [[V.alloc(4, 4), V.alloc(4, 4)] for _ in range(2)]
    fb = [[[V.alloc(4, 4), V.alloc(4, 4)] for _ in range(2)] for _ in range(2)]
    def rd(u, buf, both):
        for q in range(2):
            o = 16*u + (8 if q == 0 else 0)
            K(f"ds_read2_b32 {vr(fa[buf][q],2)}, v{aad} offset0:{o} offset1:{o+1}")
            K(f"ds_read2_b32 {vr(fa[buf][q]+2,2)}, v{aad} offset0:{o+2} offset1:{o+3}")
        for c in ((0, 1) if both else (1,)):
            for q in range(2):
                K(f"ds_read_b128 {vr(fb[buf][c][q],4)}, v{bad} offset:{64*u + (32 if q == 0 else 0) + (2048 if c == 0 else 0)}")
    s_ci = S.alloc()
    def cloop(n_iter, both):
        nrd = 4 + (4 if both else 2)
        L = K.newlabel("cloop")
        K(f"s_mov_b32 s{s_ci}, 0")
        K.label(L)
        rd(0, 0, both)
        for u in range(8):
            buf = u & 1
            if u < 7:
                rd(u + 1, buf ^ 1, both)
                K(f"s_waitcnt lgkmcnt({nrd})")
            else:
                K("s_waitcnt lgkmcnt(0)")
            for c in ((0, 1) if both else (1,)):
                for q in range(2):
                    K(f"v_mfma_f32_32x32x16_bf16 {vr(Y[c],16)}, {vr(fa[buf][q],4)}, {vr(fb[buf][c][q],4)}, {vr(Y[c],16)}")
        K(f"v_add_u32 v{aad}, 512, v{aad}")
        K(f"v_add_u32 v{bad}, 512, v{bad}")
        K(f"s_add_u32 s{s_ci}, s{s_ci}, 1")
        K(f"s_cmp_lt_u32 s{s_ci}, {n_iter}")
        K(f"s_cbranch_scc1 {L}")
    cloop(4, True)
    cloop(4, False)
    K.flush()
    ua = V.alloc(); sa_ = V.alloc(); ur = V.alloc(2, 2); uf = [V.alloc() for _ in range(4)]; tt = V.alloc(); op = V.alloc(2, 2)
    K(f"v_lshlrev_b32 v{ua}, 6, v{l32}")
    K(f"v_lshl_add_u32 v{ua}, v{hh}, 3, v{ua}")
    K(f"v_sub_u32 v{ua}, {CONV_U + 4088 - 2048 - 48}, v{ua}")
    K(f"v_add_u32 v{ua}, s{s_cb}, v{ua}")
    K(f"v_lshlrev_b32 v{sa_}, 6, v{l32}")
    K(f"v_lshl_add_u32 v{sa_}, v{hh}, 3, v{sa_}")
    K(f"s_lshl_b32 s{s_t2}, s{s_d}, 12")
    K(f"s_add_u32 s{s_t2}, s{s_t2}, {WS_ZT}")
    for c in range(2):
        for g in range(4):
            y = Y[c] + 4*g
            K(f"ds_read_b64 {vr(ur,2)}, v{ua} offset:{(2048 if c == 0 else 0) + 16*(3-g)}")
            rnd2(K, y, y+1, tt); rnd2(K, y+2, y+3, tt)
            K("s_waitcnt lgkmcnt(0)")
            unpack(K, uf[3], ur, 0); unpack(K, uf[2], ur, 1); unpack(K, uf[1], ur+1, 0); unpack(K, uf[0], ur+1, 1)
            for i in range(4): K(f"v_mul_f32 v{uf[i]}, s{s_D}, v{uf[i]}")
            rnd2(K, uf[0], uf[1], tt); rnd2(K, uf[2], uf[3], tt)
            for i in range(4): K(f"v_add_f32 v{y+i}, v{y+i}, v{uf[i]}")
            K(f"v_cvt_pk_bf16_f32 v{op}, v{y}, v{y+1}")
            K(f"v_cvt_pk_bf16_f32 v{op+1}, v{y+2}, v{y+3}")
            K(f"s_add_u32 s{s_t}, s{s_t2}, {c*2048 + g*16}")
            K(f"buffer_store_dwordx2 {vr(op,2)}, v{sa_}, {sr(srdWS,4)}, s{s_t} offen")
    K.label(L_end); K.hist = []
    K("s_endpgm")
    return K, max(attn_v, V.maxused + 1), S.maxused + 1
```
